```python
import torch

def _softmax(x, axis=-1):
    return torch.softmax(x, dim=axis)
def _gelu(x):
    return torch.nn.functional.gelu(x, approximate="tanh")
def _silu(x):
    return torch.nn.functional.silu(x)
def _sigmoid(x):
    return torch.sigmoid(x)
def _layernorm(x, axis=-1, eps=1e-5):
    m = x.mean(dim=axis, keepdim=True)
    v = x.var(dim=axis, keepdim=True, unbiased=False)
    return (x - m) / torch.sqrt(v + eps)
def _scatter_add(tgt, idx, src, axis=0):
    return tgt.clone().index_add_(axis, idx, src)
def _segment_sum(src, seg, n):
    out = torch.zeros((n,) + src.shape[1:], dtype=src.dtype)
    return out.index_add_(0, seg, src)
def _pad(x, pw):
    flat = tuple(v for pair in reversed(pw) for v in pair)
    return torch.nn.functional.pad(x, flat)

kernel_name = 'parallel_sum__grouped_kv_mqa__mixer_channel_mlp__prompt'

def setup_inputs():

    _w = (lambda a: (lambda t: t.to(torch.bfloat16) if t.is_floating_point() else t)(torch.as_tensor(a)))
    def _A_setup():
        B, S, D, H = 1, 2048, 576, 32
        Dh = D // H
        return {
            "x": _w((lambda *s: torch.randn(*s, dtype=torch.bfloat16) * 0.05)(B, S, D)),
            "wq": _w((lambda *s: torch.randn(*s, dtype=torch.bfloat16) * 0.05)(D, H * Dh)),
            "wk": _w((lambda *s: torch.randn(*s, dtype=torch.bfloat16) * 0.05)(D, Dh)),
            "wv": _w((lambda *s: torch.randn(*s, dtype=torch.bfloat16) * 0.05)(D, Dh)),
            "wo": _w((lambda *s: torch.randn(*s, dtype=torch.bfloat16) * 0.05)(H * Dh, D)),
        }
    _A_in = _A_setup()

    def _B_setup():
        B, S, D, F = 1, 2048, 576, 4608
        return {
            "x": _w((lambda *s: torch.randn(*s, dtype=torch.bfloat16) * 0.05)(B, S, D)),
            "w1": _w((lambda *s: torch.randn(*s, dtype=torch.bfloat16) * 3.2)(D, F) * (D ** -0.5)),
            "b1": _w((lambda *s: torch.randn(*s, dtype=torch.bfloat16) * 0.8)(F)),
            "w2": _w((lambda *s: torch.randn(*s, dtype=torch.bfloat16) * 0.1)(F, D) * (F ** -0.5)),
            "b2": _w((lambda *s: torch.randn(*s, dtype=torch.bfloat16) * 0.1)(D)),
        }
    _B_in = _B_setup()

    return {
        "A_x": _A_in["x"],
        "A_wq": _A_in["wq"],
        "A_wk": _A_in["wk"],
        "A_wv": _A_in["wv"],
        "A_wo": _A_in["wo"],
        "B_x": _B_in["x"],
        "B_w1": _B_in["w1"],
        "B_b1": _B_in["b1"],
        "B_w2": _B_in["w2"],
        "B_b2": _B_in["b2"],
    }

def reference(A_x, A_wq, A_wk, A_wv, A_wo, B_x, B_w1, B_b1, B_w2, B_b2):
    def _A_ref(x, wq, wk, wv, wo):
        B, S, D = x.shape
        H = 32
        Dh = D // H
        q = (lambda x, *d: x.permute(*d))((x @ wq).reshape(B, S, H, Dh), 0, 2, 1, 3)
        k = x @ wk
        v = x @ wv
        scores = torch.einsum("bhqd,bkd->bhqk", q, k) * (Dh ** -0.5)
        p = _softmax(scores, axis=-1)
        o = torch.einsum("bhqk,bkd->bhqd", p, v)
        return (lambda x, *d: x.permute(*d))(o, 0, 2, 1, 3).reshape(B, S, H * Dh) @ wo

    def _B_ref(x, w1, b1, w2, b2):
        y = _layernorm(x, axis=-1)
        h = _gelu(torch.einsum("bsd,df->bsf", y, w1) + b1)
        return torch.einsum("bsf,fd->bsd", h, w2) + b2

    x = A_x
    xn = _layernorm(x, axis=-1)
    return x + _A_ref(xn, A_wq, A_wk, A_wv, A_wo) + _B_ref(xn, B_w1, B_b1, B_w2, B_b2)
```

```python
import math, struct, sys

S_TOK = 2048
D = 576
F = 4608
H = 32
DH = 18

SZ_ACT = S_TOK * D * 2
WS_XN = 0
WS_Y = WS_XN + SZ_ACT
WS_Q = WS_Y + SZ_ACT
WS_O = WS_Q + SZ_ACT
WS_WKV = WS_O + SZ_ACT
WS_KM = WS_WKV + 576 * 64 * 2
WS_KE = WS_KM + 2048 * 32
WS_VT = WS_KE + 2048 * 4
WS_H = WS_VT + 128 * 1024 + 8192
WS_P = WS_H + S_TOK * F * 2
WS_END = WS_P + 4 * S_TOK * D * 4
WS_BYTES = 268435456

KA = dict(x=0, wq=8, wk=16, wv=24, wo=32, bx=40, w1=48, b1=56, w2=64, b2=72, out=80, dbg=88, ws=96)
SZ = dict(x=SZ_ACT, wq=D * D * 2, wk=D * 18 * 2, wv=D * 18 * 2, wo=D * D * 2, w1=D * F * 2, b1=F * 2,
          w2=F * D * 2, b2=D * 2, out=SZ_ACT, ws=WS_BYTES)


def f32bits(x):
    return struct.unpack('<I', struct.pack('<f', x))[0]


def magic(div, maxval):
    for sh in range(8, 31):
        M = -(-(1 << sh) // div)
        if M * maxval >= (1 << 32):
            break
        if all(((c * M) >> sh) == c // div for c in range(maxval)):
            return M, sh
    raise ValueError("no magic")


class Kern:
    def __init__(self, name):
        self.name = name
        self.L = []
        self.maxv = 0
        self.maxs = 0
        self.lbl = 0

    def e(self, s):
        self.L.append("  " + s)

    def c(self, s):
        self.L.append("  ; " + s)

    def label(self, l):
        self.L.append(l + ":")

    def newlabel(self, p="L"):
        self.lbl += 1
        return f"{self.name}_{p}{self.lbl}"

    def srd(self, sbase, arg, off=0, size=None):
        self.e(f"s_load_dwordx2 s[{sbase}:{sbase+1}], s[0:1], {KA[arg]}")
        self._pending = getattr(self, "_pending", [])
        self._pending.append((sbase, arg, off, size))

    def srd_finish(self):
        self.e("s_waitcnt lgkmcnt(0)")
        for sbase, arg, off, size in self._pending:
            if off:
                self.e(f"s_add_u32 s{sbase}, s{sbase}, {off}")
                self.e(f"s_addc_u32 s{sbase+1}, s{sbase+1}, 0")
            sz = (SZ[arg] - off) if size is None else size
            self.e(f"s_mov_b32 s{sbase+2}, {sz}")
            self.e(f"s_mov_b32 s{sbase+3}, 0x00020000")
        self._pending = []

    def text(self):
        return "\n".join(self.L)


def vr(a, n=1):
    return f"v{a}" if n == 1 else f"v[{a}:{a+n-1}]"


def sr(a, n=1):
    return f"s{a}" if n == 1 else f"s[{a}:{a+n-1}]"


def gen_ln(name):
    k = Kern(name)
    e = k.e
    done = k.newlabel("done")
    e("s_cmp_ge_u32 s2, 256")
    e(f"s_cbranch_scc1 {done}")
    k.srd(4, "x")
    k.srd(8, "ws", WS_XN, SZ_ACT)
    k.srd(12, "ws", WS_Y, SZ_ACT)
    k.srd(16, "wk")
    k.srd(20, "wv")
    k.srd(24, "ws", WS_WKV, 576 * 64 * 2)
    k.srd_finish()
    e("v_lshrrev_b32 v1, 5, v0")
    e("s_lshl_b32 s3, s2, 3")
    e("v_add_u32 v1, s3, v1")
    e("s_movk_i32 s28, 1152")
    e("v_mul_lo_u32 v1, v1, s28")
    e("v_and_b32 v2, 31, v0")
    e("v_lshl_add_u32 v1, v2, 2, v1")
    X = 4
    for i in range(9):
        e(f"buffer_load_dword v{X+i}, v1, s[4:7], 0 offen offset:{128*i}")
    skip = k.newlabel("skipw")
    e("s_cmp_ge_u32 s2, 144")
    e(f"s_cbranch_scc1 {skip}")
    e("v_lshrrev_b32 v60, 6, v0")
    e("s_lshl_b32 s3, s2, 2")
    e("v_add_u32 v60, s3, v60")
    e("v_and_b32 v61, 63, v0")
    e("v_mul_u32_u24 v62, 36, v60")
    e("v_lshl_add_u32 v63, v61, 1, v62")
    e("v_mov_b32 v58, 0x80000000")
    e("v_cmp_gt_u32 vcc, 18, v61")
    e("s_nop 1")
    e("v_cndmask_b32 v63, v58, v63, vcc")
    e("v_subrev_u32 v59, 32, v61")
    e("v_lshl_add_u32 v57, v59, 1, v62")
    e("v_cmp_gt_u32 vcc, 18, v59")
    e("s_nop 1")
    e("v_cndmask_b32 v57, v58, v57, vcc")
    e("buffer_load_ushort v56, v63, s[16:19], 0 offen")
    e("buffer_load_ushort v55, v57, s[20:23], 0 offen")
    e("v_lshlrev_b32 v60, 7, v60")
    e("v_lshl_add_u32 v60, v61, 1, v60")
    e("s_waitcnt vmcnt(0)")
    e("v_or_b32 v56, v56, v55")
    e("buffer_store_short v56, v60, s[24:27], 0 offen")
    k.label(skip)
    e("s_waitcnt vmcnt(0)")
    E = 16
    T = 40

    def unpack(src0):
        for i in range(9):
            e(f"v_lshlrev_b32 v{E+2*i}, 16, v{src0+i}")
            e(f"v_and_b32 v{E+2*i+1}, 0xffff0000, v{src0+i}")

    def reduce32(r, t):
        for mod in ("quad_perm:[1,0,3,2]", "quad_perm:[2,3,0,1]", "row_half_mirror", "row_mirror"):
            e("s_nop 1")
            e(f"v_add_f32_dpp v{t}, v{r}, v{r} {mod} row_mask:0xf bank_mask:0xf")
            e(f"v_mov_b32 v{r}, v{t}")
        e(f"ds_swizzle_b32 v{t}, v{r} offset:0x401F")
        e("s_waitcnt lgkmcnt(0)")
        e(f"v_add_f32 v{r}, v{r}, v{t}")

    def bf16r(r):
        e(f"v_cvt_pk_bf16_f32 v{r}, v{r}, v{r}")
        e(f"v_lshlrev_b32 v{r}, 16, v{r}")

    def layernorm(dst):
        e(f"v_add_f32 v{T}, v{E}, v{E+1}")
        for i in range(2, 18):
            e(f"v_add_f32 v{T}, v{T}, v{E+i}")
        reduce32(T, T + 1)
        e(f"v_mul_f32 v{T}, 0x{f32bits(1.0/576):08x}, v{T}")
        e(f"v_sub_f32 v{T+2}, v{E}, v{T}")
        e(f"v_mul_f32 v{T+3}, v{T+2}, v{T+2}")
        for i in range(1, 18):
            e(f"v_sub_f32 v{T+2}, v{E+i}, v{T}")
            e(f"v_fmac_f32 v{T+3}, v{T+2}, v{T+2}")
        reduce32(T + 3, T + 1)
        e(f"v_mul_f32 v{T+3}, 0x{f32bits(1.0/576):08x}, v{T+3}")
        bf16r(T)
        bf16r(T + 3)
        e(f"v_add_f32 v{T+3}, 0x{f32bits(1e-5):08x}, v{T+3}")
        bf16r(T + 3)
        e(f"v_sqrt_f32 v{T+3}, v{T+3}")
        e("s_nop 0")
        bf16r(T + 3)
        e(f"v_rcp_f32 v{T+3}, v{T+3}")
        for i in range(9):
            e(f"v_sub_f32 v{T+4}, v{E+2*i}, v{T}")
            e(f"v_sub_f32 v{T+5}, v{E+2*i+1}, v{T}")
            e(f"v_cvt_pk_bf16_f32 v{T+4}, v{T+4}, v{T+5}")
            e(f"v_and_b32 v{T+5}, 0xffff0000, v{T+4}")
            e(f"v_lshlrev_b32 v{T+4}, 16, v{T+4}")
            e(f"v_mul_f32 v{T+4}, v{T+4}, v{T+3}")
            e(f"v_mul_f32 v{T+5}, v{T+5}, v{T+3}")
            e(f"v_cvt_pk_bf16_f32 v{dst+i}, v{T+4}, v{T+5}")

    unpack(X)
    layernorm(X)
    for i in range(9):
        e(f"buffer_store_dword v{X+i}, v1, s[8:11], 0 offen offset:{128*i}")
    unpack(X)
    Y = 64
    layernorm(Y)
    for i in range(9):
        e(f"buffer_store_dword v{Y+i}, v1, s[12:15], 0 offen offset:{128*i}")
    k.label(done)
    e("s_endpgm")
    k.maxv = 80
    k.maxs = 32
    return k


class Gemm:
    def __init__(self, k, cfg):
        self.k = k
        self.__dict__.update(cfg)
        self.TM = self.wm * self.mt * 16
        self.RS = self.nt * 32
        self.gap = cfg.get("gap", 128)
        self.CGv = 8 * self.RS // 16
        self.CG = self.CGv + self.gap // 16
        self.xbytes = self.wk * self.TM * 128
        nch = 8 * self.wk * self.CG
        self.nWd = -(-(-(-nch // 64)) // 4)
        self.wbytes = self.nWd * 4 * 1024
        self.stage_bytes = self.xbytes + self.wbytes
        self.nXd = self.xbytes // 1024 // 4
        assert self.nXd % 2 == 0
        self.lds = 2 * self.stage_bytes

    def body(self, sX, sW, s_xoff, s_woff, vbase, acc_init=None):
        k = self.k
        e = k.e
        mt, nt, wm, wk = self.mt, self.nt, self.wm, self.wk
        v = vbase
        self.ACC = ACC = v; v += 4 * mt * nt
        XF = [v, v + 4 * mt]; v += 8 * mt
        NW = 4
        WF = [v + 4 * i for i in range(NW)]; v += 4 * NW
        vXa = [v, v + 1]; v += 2
        vWa = v; v += 1
        vXb = [v, v + 1]; v += 2
        vWb = v; v += 1
        vXg = [v, v + 1]; v += 2
        vWg = [v + i for i in range(self.nWd)]; v += self.nWd
        vt = [v, v + 1, v + 2, v + 3]; v += 4
        self.vfree = v - 4
        self.vt = vt
        k.maxv = max(k.maxv, v)
        SW, SWM, SWK, SXB, SLX, SLW, ST = 40, 41, 42, 43, 44, 45, 46
        self.s_wave, self.s_wm, self.s_wk = SW, SWM, SWK
        e(f"v_lshrrev_b32 v{vt[0]}, 6, v0")
        e("s_nop 0")
        e(f"v_readfirstlane_b32 s{SW}, v{vt[0]}")
        e(f"v_and_b32 v{vt[1]}, 63, v0")
        lane = vt[1]
        e("s_nop 2")
        if wk == 1:
            e(f"s_mov_b32 s{SWM}, s{SW}")
            e(f"s_mov_b32 s{SWK}, 0")
        else:
            assert wm == 2 and wk == 2
            e(f"s_and_b32 s{SWM}, s{SW}, 1")
            e(f"s_lshr_b32 s{SWK}, s{SW}, 1")
        e(f"v_lshrrev_b32 v{vt[0]}, 3, v{lane}")
        e(f"s_mov_b32 s{ST}, {self.XS}")
        e(f"v_mul_lo_u32 v{vt[0]}, v{vt[0]}, s{ST}")
        e(f"v_lshrrev_b32 v{vt[2]}, 4, v{lane}")
        e(f"v_and_b32 v{vt[3]}, 7, v{lane}")
        e(f"v_xor_b32 v{vt[2]}, v{vt[2]}, v{vt[3]}")
        e(f"v_lshl_add_u32 v{vXg[0]}, v{vt[2]}, 4, v{vt[0]}")
        e(f"v_xor_b32 v{vt[2]}, 4, v{vt[2]}")
        e(f"v_lshl_add_u32 v{vXg[1]}, v{vt[2]}, 4, v{vt[0]}")
        rows_pw = self.nXd * 8
        if wk == 1:
            e(f"s_mul_i32 s{SXB}, s{SW}, {rows_pw * self.XS}")
        else:
            assert rows_pw * 2 == self.TM
            e(f"s_and_b32 s{ST}, s{SW}, 1")
            e(f"s_mul_i32 s{SXB}, s{ST}, {rows_pw * self.XS}")
            e(f"s_lshr_b32 s{ST}, s{SW}, 1")
            e(f"s_mul_i32 s{ST}, s{ST}, {self.kgrp * 2}")
            e(f"s_add_u32 s{SXB}, s{SXB}, s{ST}")
        e(f"s_add_u32 s{SXB}, s{SXB}, s{s_xoff}")
        e(f"s_mul_i32 s{SLX}, s{SW}, {self.nXd * 1024}")
        e(f"s_mul_i32 s{SLW}, s{SW}, {self.nWd * 1024}")
        e(f"s_add_u32 s{SLW}, s{SLW}, {self.xbytes}")
        nch_max = self.nWd * 4 * 64
        M1, sh1 = magic(self.CG, nch_max)
        M2, sh2 = magic(self.RS // 16, self.CG)
        for i in range(self.nWd):
            e(f"s_mul_i32 s{ST}, s{SW}, {self.nWd * 64}")
            e(f"s_add_u32 s{ST}, s{ST}, {i * 64}")
            e(f"v_add_u32 v{vt[0]}, s{ST}, v{lane}")
            e(f"s_mov_b32 s{ST}, {M1}")
            e(f"v_mul_lo_u32 v{vt[2]}, v{vt[0]}, s{ST}")
            e(f"v_lshrrev_b32 v{vt[2]}, {sh1}, v{vt[2]}")
            e(f"v_mul_u32_u24 v{vt[3]}, {self.CG}, v{vt[2]}")
            e(f"v_sub_u32 v{vt[0]}, v{vt[0]}, v{vt[3]}")
            e(f"v_mul_u32_u24 v{vt[3]}, {M2}, v{vt[0]}")
            e(f"v_lshrrev_b32 v{vt[3]}, {sh2}, v{vt[3]}")
            g = vWg[i]
            e(f"v_mul_u32_u24 v{g}, {self.RS // 16}, v{vt[3]}")
            e(f"v_sub_u32 v{g}, v{vt[0]}, v{g}")
            e(f"v_lshlrev_b32 v{g}, 4, v{g}")
            e(f"v_lshl_add_u32 v{vt[3]}, v{vt[2]}, 3, v{vt[3]}")
            if wk == 2:
                e(f"v_lshrrev_b32 v{vXa[0]}, 6, v{vt[3]}")
                e(f"v_mul_u32_u24 v{vXa[0]}, {self.kgrp}, v{vXa[0]}")
                e(f"v_and_b32 v{vt[3]}, 63, v{vt[3]}")
                e(f"v_add_u32 v{vt[3]}, v{vt[3]}, v{vXa[0]}")
            e(f"s_mov_b32 s{ST}, {self.WSb}")
            e(f"v_mul_lo_u32 v{vt[3]}, v{vt[3]}, s{ST}")
            e(f"v_add_u32 v{g}, v{g}, v{vt[3]}")
            e(f"v_cmp_gt_u32 vcc, {self.CGv}, v{vt[0]}")
            e(f"v_cmp_gt_u32 s[48:49], {8 * wk}, v{vt[2]}")
            e("s_nop 1")
            e("s_and_b64 vcc, vcc, s[48:49]")
            e(f"v_mov_b32 v{vt[3]}, 0x80000000")
            e("s_nop 1")
            e(f"v_cndmask_b32 v{g}, v{vt[3]}, v{g}, vcc")
        e(f"v_and_b32 v{vt[0]}, 15, v{lane}")
        e(f"v_lshrrev_b32 v{vt[2]}, 4, v{lane}")
        e(f"v_lshrrev_b32 v{vt[3]}, 1, v{vt[0]}")
        e(f"v_xor_b32 v{vt[3]}, v{vt[3]}, v{vt[2]}")
        e(f"v_lshlrev_b32 v{vt[0]}, 7, v{vt[0]}")
        e(f"v_lshl_add_u32 v{vXa[0]}, v{vt[3]}, 4, v{vt[0]}")
        e(f"s_mul_i32 s{ST}, s{SWM}, {mt * 16 * 128}")
        e(f"s_mul_i32 s47, s{SWK}, {self.TM * 128}")
        e(f"s_add_u32 s{ST}, s{ST}, s47")
        e(f"v_add_u32 v{vXa[0]}, s{ST}, v{vXa[0]}")
        e(f"v_xor_b32 v{vXa[1]}, 64, v{vXa[0]}")
        e(f"v_bfe_u32 v{vt[0]}, v{lane}, 2, 2")
        e(f"v_lshl_add_u32 v{vt[0]}, v{vt[2]}, 3, v{vt[0]}")
        e(f"v_mul_u32_u24 v{vt[0]}, {self.RS}, v{vt[0]}")
        e(f"v_mul_u32_u24 v{vt[3]}, {self.gap}, v{vt[2]}")
        e(f"v_add_u32 v{vt[0]}, v{vt[0]}, v{vt[3]}")
        e(f"v_and_b32 v{vt[3]}, 3, v{lane}")
        e(f"v_lshl_add_u32 v{vWa}, v{vt[3]}, 3, v{vt[0]}")
        e(f"s_mul_i32 s{ST}, s{SWK}, {64 * self.RS + 8 * self.gap}")
        e(f"s_add_u32 s{ST}, s{ST}, {self.xbytes}")
        e(f"v_add_u32 v{vWa}, s{ST}, v{vWa}")
        e(f"v_add_u32 v{vXb[0]}, {self.stage_bytes}, v{vXa[0]}")
        e(f"v_add_u32 v{vXb[1]}, {self.stage_bytes}, v{vXa[1]}")
        e(f"v_add_u32 v{vWb}, {self.stage_bytes}, v{vWa}")

        def dma_list(st):
            buf = (st & 1) * self.stage_bytes
            out = []
            for i in range(self.nXd):
                out.append([f"s_add_u32 m0, s{SLX}, {buf + i * 1024}",
                            f"s_add_u32 s{ST}, s{SXB}, {i * 8 * self.XS + st * 128}",
                            f"buffer_load_dwordx4 v{vXg[i & 1]}, s[{sX}:{sX+3}], s{ST} offen lds"])
            for i in range(self.nWd):
                out.append([f"s_add_u32 m0, s{SLW}, {buf + i * 1024}",
                            f"s_add_u32 s{ST}, s{s_woff}, {st * 64 * self.WSb}",
                            f"buffer_load_dwordx4 v{vWg[i]}, s[{sW}:{sW+3}], s{ST} offen lds"])
            return out

        for g in dma_list(0):
            for l in g:
                e(l)
        if acc_init is None:
            for r in range(4 * mt * nt):
                e(f"v_mov_b32 v{ACC + r}, 0")
        else:
            acc_init(self)
        fifo = []

        def issue(idn, line):
            e(line)
            fifo.append(idn)

        def need(ids):
            pos = max((fifo.index(i) for i in ids if i in fifo), default=-1)
            if pos >= 0:
                n = len(fifo) - 1 - pos
                e(f"s_waitcnt lgkmcnt({min(n, 15)})")
                del fifo[:pos + 1]

        PF = 3
        nsteps = 2 * nt
        for st in range(self.nst):
            aX = vXb if (st & 1) else vXa
            aW = vWb if (st & 1) else vWa
            e("s_waitcnt vmcnt(0)")
            e("s_barrier")
            dmas = dma_list(st + 1) if st + 1 < self.nst else []

            def rdX(ks):
                for i in range(mt):
                    issue(("X", ks, i), f"ds_read_b128 v[{XF[ks]+4*i}:{XF[ks]+4*i+3}], v{aX[ks]} offset:{2048*i}")

            def rdW(t):
                ks, j = divmod(t, nt)
                w = WF[t % NW]
                o = ks * (32 * self.RS + 4 * self.gap) + 32 * j
                issue(("W", t, 0), f"ds_read_b64_tr_b16 v[{w}:{w+1}], v{aW} offset:{o}")
                issue(("W", t, 1), f"ds_read_b64_tr_b16 v[{w+2}:{w+3}], v{aW} offset:{o + 4*self.RS}")

            rdW(0)
            rdX(0)
            for t in range(1, min(PF, nsteps)):
                rdW(t)
            for t in range(nsteps):
                ks, j = divmod(t, nt)
                if t + PF < nsteps:
                    rdW(t + PF)
                if t == min(2, nt - 1):
                    rdX(1)
                if dmas:
                    for l in dmas.pop(0):
                        e(l)
                ids = [("W", t, 0), ("W", t, 1)]
                if j == 0:
                    ids += [("X", ks, i) for i in range(mt)]
                need(ids)
                w = WF[t % NW]
                for i in range(mt):
                    a = ACC + 4 * (i * nt + j)
                    e(f"v_mfma_f32_16x16x32_bf16 v[{a}:{a+3}], v[{w}:{w+3}], v[{XF[ks]+4*i}:{XF[ks]+4*i+3}], v[{a}:{a+3}]")
            while dmas:
                for l in dmas.pop(0):
                    e(l)
            assert not fifo
        e("s_nop 7")
        e("s_nop 7")


GELU_C0 = -2.0 * math.log2(math.e) * math.sqrt(2.0 / math.pi)
GELU_C1 = GELU_C0 * 0.044715
QSCALE = math.log2(math.e) / math.sqrt(18.0)


def lane_consts(k, g, v_tok, v_g):
    k.e(f"v_and_b32 v{v_tok}, 15, v0")
    k.e(f"v_bfe_u32 v{v_g}, v0, 4, 2")


def gen_qkv(name):
    k = Kern(name)
    e = k.e
    done = k.newlabel("done")
    kvl = k.newlabel("kv")
    e("s_cmp_ge_u32 s2, 160")
    e(f"s_cbranch_scc1 {done}")
    k.srd(4, "ws", WS_XN, SZ_ACT)
    k.srd(8, "wq")
    k.srd(12, "ws", WS_Q, SZ_ACT)
    k.srd(16, "ws", WS_WKV, 576 * 64 * 2)
    k.srd(20, "ws", WS_KM, WS_H - WS_KM)
    k.srd_finish()
    e("s_cmp_ge_u32 s2, 128")
    e(f"s_cbranch_scc1 {kvl}")
    g = Gemm(k, dict(mt=1, nt=9, wm=4, wk=1, nst=9, XS=1152, WSb=1152, kgrp=576))
    e("s_lshr_b32 s30, s2, 2")
    e("s_and_b32 s31, s2, 3")
    e(f"s_mul_i32 s32, s30, {64 * 1152}")
    e(f"s_mul_i32 s33, s31, {144 * 2}")
    g.body(4, 8, 32, 33, 4)
    vt = g.vfree
    lane_consts(k, g, vt, vt + 1)
    e(f"s_lshl_b32 s34, s{g.s_wm}, 4")
    e(f"v_add_u32 v{vt}, s34, v{vt}")
    e(f"s_movk_i32 s34, 1152")
    e(f"v_mul_lo_u32 v{vt}, v{vt}, s34")
    e(f"v_lshl_add_u32 v{vt}, v{vt+1}, 3, v{vt}")
    e(f"s_add_u32 s34, s32, s33")
    e(f"s_mov_b32 s35, 0x{f32bits(QSCALE):08x}")
    for j in range(9):
        a = g.ACC + 4 * j
        for r in range(4):
            e(f"v_mul_f32 v{a+r}, s35, v{a+r}")
        e(f"v_cvt_pk_bf16_f32 v{a}, v{a}, v{a+1}")
        e(f"v_cvt_pk_bf16_f32 v{a+1}, v{a+2}, v{a+3}")
        e(f"buffer_store_dwordx2 v[{a}:{a+1}], v{vt}, s[12:15], s34 offen offset:{32*j}")
    e(f"s_branch {done}")
    k.label(kvl)
    g2 = Gemm(k, dict(mt=1, nt=4, wm=4, wk=1, nst=9, XS=1152, WSb=128, kgrp=576, gap=32))
    e("s_sub_u32 s30, s2, 128")
    e(f"s_mul_i32 s32, s30, {64 * 1152}")
    e("s_mov_b32 s33, 0")
    g2.body(4, 16, 32, 33, 4)
    vt = g2.vfree
    A = g2.ACC
    lane_consts(k, g2, vt, vt + 1)
    e(f"s_lshl_b32 s34, s{g2.s_wm}, 4")
    e(f"s_lshl_b32 s35, s30, 6")
    e(f"s_add_u32 s34, s34, s35")
    e(f"v_add_u32 v{vt}, s34, v{vt}")
    tk, gg, t2, t3 = vt, vt + 1, vt + 2, vt + 3
    big = A + 16
    e(f"v_mov_b32 v{big}, 0x80000000")
    e(f"v_lshlrev_b32 v{t2}, 5, v{tk}")
    e(f"v_lshl_add_u32 v{t2}, v{gg}, 3, v{t2}")
    e(f"v_cvt_pk_bf16_f32 v{A}, v{A}, v{A+1}")
    e(f"v_cvt_pk_bf16_f32 v{A+1}, v{A+2}, v{A+3}")
    e(f"buffer_store_dwordx2 v[{A}:{A+1}], v{t2}, s[20:23], 0 offen")
    e(f"v_cmp_eq_u32 vcc, 0, v{gg}")
    e(f"v_lshlrev_b32 v{t2}, 2, v{tk}")
    e(f"v_add_u32 v{t2}, {WS_KE - WS_KM}, v{t2}")
    e(f"v_cndmask_b32 v{t2}, v{big}, v{t2}, vcc")
    e(f"v_cvt_pk_bf16_f32 v{A+4}, v{A+4}, v{A+5}")
    e(f"buffer_store_dword v{A+4}, v{t2}, s[20:23], 0 offen")
    e(f"v_lshrrev_b32 v{t2}, 4, v{tk}")
    e(f"v_lshlrev_b32 v{t2}, 10, v{t2}")
    e(f"v_bfe_u32 v{t3}, v{tk}, 2, 1")
    e(f"v_lshl_add_u32 v{t2}, v{t3}, 9, v{t2}")
    e(f"v_and_b32 v{t3}, 3, v{tk}")
    e(f"v_lshl_add_u32 v{t2}, v{t3}, 1, v{t2}")
    e(f"v_bfe_u32 v{t3}, v{tk}, 3, 1")
    e(f"v_lshl_add_u32 v{t2}, v{t3}, 3, v{t2}")
    e(f"v_add_u32 v{t2}, {WS_VT - WS_KM}, v{t2}")
    e(f"v_lshl_add_u32 v{t3}, v{gg}, 6, v{t2}")
    e(f"v_cvt_pk_bf16_f32 v{A+8}, v{A+8}, v{A+9}")
    e(f"v_cvt_pk_bf16_f32 v{A+9}, v{A+10}, v{A+11}")
    e(f"buffer_store_short v{A+8}, v{t3}, s[20:23], 0 offen")
    e(f"buffer_store_short_d16_hi v{A+8}, v{t3}, s[20:23], 0 offen offset:16")
    e(f"buffer_store_short v{A+9}, v{t3}, s[20:23], 0 offen offset:32")
    e(f"buffer_store_short_d16_hi v{A+9}, v{t3}, s[20:23], 0 offen offset:48")
    e(f"v_cndmask_b32 v{t3}, v{big}, v{t2}, vcc")
    e(f"v_cvt_pk_bf16_f32 v{A+12}, v{A+12}, v{A+13}")
    e(f"v_mov_b32 v{A+13}, 0x3f80")
    e(f"buffer_store_short v{A+12}, v{t3}, s[20:23], 0 offen offset:256")
    e(f"buffer_store_short_d16_hi v{A+12}, v{t3}, s[20:23], 0 offen offset:272")
    e(f"buffer_store_short v{A+13}, v{t3}, s[20:23], 0 offen offset:288")
    k.label(done)
    e("s_endpgm")
    k.maxs = 60
    k.ldsz = max(g.lds, g2.lds)
    return k


def gen_gemm1(name):
    k = Kern(name)
    e = k.e
    done = k.newlabel("done")
    e("s_cmp_ge_u32 s2, 256")
    e(f"s_cbranch_scc1 {done}")
    k.srd(4, "ws", WS_Y, SZ_ACT)
    k.srd(8, "w1")
    k.srd(12, "ws", WS_H, S_TOK * F * 2)
    k.srd(16, "b1")
    k.srd_finish()
    g = Gemm(k, dict(mt=4, nt=9, wm=4, wk=1, nst=9, XS=1152, WSb=9216, kgrp=576))
    e("s_and_b32 s30, s2, 7")
    e("s_lshr_b32 s31, s2, 3")
    e(f"s_mul_i32 s32, s30, {256 * 1152}")
    e(f"s_mul_i32 s33, s31, {144 * 2}")

    def init(g):
        t = g.vt
        e(f"v_bfe_u32 v{t[0]}, v0, 4, 2")
        e(f"v_lshlrev_b32 v{t[0]}, 3, v{t[0]}")
        A = g.ACC
        for j in range(9):
            e(f"buffer_load_dwordx2 v[{A+4*j}:{A+4*j+1}], v{t[0]}, s[16:19], s33 offen offset:{32*j}")
        e("s_waitcnt vmcnt(0)")
        for j in range(9):
            a = A + 4 * j
            e(f"v_and_b32 v{a+3}, 0xffff0000, v{a+1}")
            e(f"v_lshlrev_b32 v{a+2}, 16, v{a+1}")
            e(f"v_and_b32 v{a+1}, 0xffff0000, v{a}")
            e(f"v_lshlrev_b32 v{a}, 16, v{a}")
        for i in range(1, 4):
            for r in range(36):
                e(f"v_mov_b32 v{A + 36*i + r}, v{A + r}")

    g.body(4, 8, 32, 33, 4, acc_init=init)
    vt = g.vfree
    lane_consts(k, g, vt, vt + 1)
    e(f"s_lshl_b32 s34, s{g.s_wm}, 6")
    e(f"s_lshl_b32 s35, s30, 8")
    e(f"s_add_u32 s34, s34, s35")
    e(f"v_add_u32 v{vt}, s34, v{vt}")
    e(f"s_movk_i32 s34, 9216")
    e(f"v_mul_lo_u32 v{vt}, v{vt}, s34")
    e(f"v_lshl_add_u32 v{vt}, v{vt+1}, 3, v{vt}")
    e(f"s_mov_b32 s36, 0x{f32bits(GELU_C0):08x}")
    e(f"s_mov_b32 s37, 0x{f32bits(GELU_C1):08x}")
    e(f"v_mov_b32 v{vt+1}, s36")
    t0, t1 = vt + 2, vt + 3
    for i in range(4):
        e(f"s_add_u32 s34, s33, {i * 16 * 9216}")
        for j in range(9):
            a = g.ACC + 4 * (i * 9 + j)
            for r in range(0, 4, 2):
                x0, x1 = a + r, a + r + 1
                e(f"v_mul_f32 v{t0}, v{x0}, v{x0}")
                e(f"v_mul_f32 v{t1}, v{x1}, v{x1}")
                e(f"v_fma_f32 v{t0}, v{t0}, s37, v{vt+1}")
                e(f"v_fma_f32 v{t1}, v{t1}, s37, v{vt+1}")
                e(f"v_mul_f32 v{t0}, v{t0}, v{x0}")
                e(f"v_mul_f32 v{t1}, v{t1}, v{x1}")
                e(f"v_exp_f32 v{t0}, v{t0}")
                e(f"v_exp_f32 v{t1}, v{t1}")
                e(f"v_add_f32 v{t0}, 1.0, v{t0}")
                e(f"v_add_f32 v{t1}, 1.0, v{t1}")
                e(f"v_rcp_f32 v{t0}, v{t0}")
                e(f"v_rcp_f32 v{t1}, v{t1}")
                e(f"v_mul_f32 v{x0}, v{x0}, v{t0}")
                e(f"v_mul_f32 v{x1}, v{x1}, v{t1}")
            e(f"v_cvt_pk_bf16_f32 v{a}, v{a}, v{a+1}")
            e(f"v_cvt_pk_bf16_f32 v{a+1}, v{a+2}, v{a+3}")
            e(f"buffer_store_dwordx2 v[{a}:{a+1}], v{vt}, s[12:15], s34 offen offset:{32*j}")
    k.label(done)
    e("s_endpgm")
    k.maxs = 60
    k.ldsz = g.lds
    return k


def gen_gemm2(name):
    k = Kern(name)
    e = k.e
    done = k.newlabel("done")
    e("s_cmp_ge_u32 s2, 256")
    e(f"s_cbranch_scc1 {done}")
    k.srd(4, "ws", WS_H, S_TOK * F * 2)
    k.srd(8, "w2")
    k.srd(12, "ws", WS_P, 4 * S_TOK * D * 4)
    k.srd_finish()
    g = Gemm(k, dict(mt=4, nt=9, wm=2, wk=2, nst=9, XS=9216, WSb=1152, kgrp=576))
    e("s_and_b32 s30, s2, 15")
    e("s_lshr_b32 s31, s2, 4")
    e("s_and_b32 s36, s31, 3")
    e("s_lshr_b32 s37, s31, 2")
    e(f"s_mul_i32 s32, s30, {128 * 9216}")
    e(f"s_mul_i32 s34, s37, {1152 * 2}")
    e("s_add_u32 s32, s32, s34")
    e(f"s_mul_i32 s33, s37, {1152 * 1152}")
    e(f"s_mul_i32 s34, s36, {144 * 2}")
    e("s_add_u32 s33, s33, s34")
    g.body(4, 8, 32, 33, 4)
    vt = g.vfree
    A = g.ACC
    e("s_barrier")
    e(f"v_and_b32 v{vt}, 63, v0")
    e(f"v_lshlrev_b32 v{vt}, 4, v{vt}")
    e(f"s_mul_i32 s34, s{g.s_wave}, {18 * 1024}")
    e(f"v_add_u32 v{vt+1}, s34, v{vt}")
    e(f"s_xor_b32 s35, s{g.s_wave}, 2")
    e(f"s_mul_i32 s34, s35, {18 * 1024}")
    e(f"v_add_u32 v{vt+2}, s34, v{vt}")
    l1 = k.newlabel("wk1")
    l2 = k.newlabel("join")
    e(f"s_cmp_eq_u32 s{g.s_wk}, 1")
    e(f"s_cbranch_scc1 {l1}")
    for q in range(18):
        e(f"ds_write_b128 v{vt+1}, v[{A+72+4*q}:{A+72+4*q+3}] offset:{1024*q}")
    e(f"s_branch {l2}")
    k.label(l1)
    for q in range(18):
        e(f"ds_write_b128 v{vt+1}, v[{A+4*q}:{A+4*q+3}] offset:{1024*q}")
    e("s_nop 1")
    for r in range(72):
        e(f"v_mov_b32 v{A+r}, v{A+72+r}")
    k.label(l2)
    e("s_waitcnt lgkmcnt(0)")
    e("s_barrier")
    for q in range(18):
        e(f"ds_read_b128 v[{A+72+4*q}:{A+72+4*q+3}], v{vt+2} offset:{1024*q}")
    lane_consts(k, g, vt, vt + 1)
    e(f"s_lshl_b32 s34, s{g.s_wm}, 6")
    e(f"s_lshl_b32 s35, s{g.s_wk}, 5")
    e(f"s_add_u32 s34, s34, s35")
    e(f"s_lshl_b32 s35, s30, 7")
    e(f"s_add_u32 s34, s34, s35")
    e(f"v_add_u32 v{vt}, s34, v{vt}")
    e(f"s_movk_i32 s34, 2304")
    e(f"v_mul_lo_u32 v{vt}, v{vt}, s34")
    e(f"v_lshl_add_u32 v{vt}, v{vt+1}, 4, v{vt}")
    e(f"s_mul_i32 s34, s37, {S_TOK * D * 4}")
    e(f"s_mul_i32 s35, s36, {144 * 4}")
    e(f"s_add_u32 s34, s34, s35")
    e(f"s_add_u32 s35, s34, {16 * 2304}")
    for q in range(18):
        e(f"s_waitcnt lgkmcnt({17 - q if 17 - q <= 15 else 15})")
        a = A + 4 * q
        for r in range(4):
            e(f"v_add_f32 v{a+r}, v{a+r}, v{a+72+r}")
        i, j = divmod(q, 9)
        e(f"buffer_store_dwordx4 v[{a}:{a+3}], v{vt}, s[12:15], s{34+i} offen offset:{64*j}")
    k.label(done)
    e("s_endpgm")
    k.maxs = 60
    k.ldsz = g.lds
    return k


def gen_final(name):
    k = Kern(name)
    e = k.e
    done = k.newlabel("done")
    e("s_cmp_ge_u32 s2, 128")
    e(f"s_cbranch_scc1 {done}")
    k.srd(4, "ws", WS_O, SZ_ACT)
    k.srd(8, "wo")
    k.srd(12, "ws", WS_P, 4 * S_TOK * D * 4)
    k.srd(16, "x")
    k.srd(20, "b2")
    k.srd(24, "out")
    k.srd_finish()
    g = Gemm(k, dict(mt=1, nt=9, wm=4, wk=1, nst=9, XS=1152, WSb=1152, kgrp=576))
    e("s_lshr_b32 s30, s2, 2")
    e("s_and_b32 s31, s2, 3")
    e(f"s_mul_i32 s32, s30, {64 * 1152}")
    e(f"s_mul_i32 s33, s31, {144 * 2}")
    g.body(4, 8, 32, 33, 4)
    vt = g.vfree
    k.maxv = max(k.maxv, vt + 4 + 60)
    lane_consts(k, g, vt, vt + 1)
    e(f"s_lshl_b32 s34, s{g.s_wm}, 4")
    e(f"v_add_u32 v{vt}, s34, v{vt}")
    e(f"s_movk_i32 s34, 1152")
    e(f"v_mul_lo_u32 v{vt+2}, v{vt}, s34")
    e(f"v_lshl_add_u32 v{vt+2}, v{vt+1}, 3, v{vt+2}")
    e(f"v_lshlrev_b32 v{vt+3}, 1, v{vt+2}")
    e(f"v_lshlrev_b32 v{vt+1}, 3, v{vt+1}")
    e(f"s_add_u32 s34, s32, s33")
    e(f"s_lshl_b32 s35, s34, 1")
    B = (vt + 5) & ~1
    for j in range(9):
        a = g.ACC + 4 * j
        e(f"buffer_load_dwordx2 v[{B}:{B+1}], v{vt+2}, s[16:19], s34 offen offset:{32*j}")
        e(f"buffer_load_dwordx2 v[{B+2}:{B+3}], v{vt+1}, s[20:23], s33 offen offset:{32*j}")
        for s in range(4):
            e(f"s_add_u32 s36, s35, {s * S_TOK * D * 4}")
            e(f"buffer_load_dwordx4 v[{B+4+4*s}:{B+7+4*s}], v{vt+3}, s[12:15], s36 offen offset:{64*j}")
        e("s_waitcnt vmcnt(0)")
        for s in range(4):
            for r in range(4):
                e(f"v_add_f32 v{a+r}, v{a+r}, v{B+4+4*s+r}")
        for src in (B, B + 2):
            e(f"v_lshlrev_b32 v{B+4}, 16, v{src}")
            e(f"v_and_b32 v{B+5}, 0xffff0000, v{src}")
            e(f"v_lshlrev_b32 v{B+6}, 16, v{src+1}")
            e(f"v_and_b32 v{B+7}, 0xffff0000, v{src+1}")
            for r in range(4):
                e(f"v_add_f32 v{a+r}, v{a+r}, v{B+4+r}")
        e(f"v_cvt_pk_bf16_f32 v{a}, v{a}, v{a+1}")
        e(f"v_cvt_pk_bf16_f32 v{a+1}, v{a+2}, v{a+3}")
        e(f"buffer_store_dwordx2 v[{a}:{a+1}], v{vt+2}, s[24:27], s34 offen offset:{32*j}")
    k.label(done)
    e("s_endpgm")
    k.maxs = 60
    k.ldsz = g.lds
    return k


def gen_attn(name):
    k = Kern(name)
    e = k.e
    done = k.newlabel("done")
    e("s_cmp_ge_u32 s2, 512")
    e(f"s_cbranch_scc1 {done}")
    k.srd(4, "ws", WS_Q, SZ_ACT)
    k.srd(8, "ws", WS_KM, WS_H - WS_KM)
    k.srd(12, "ws", WS_O, SZ_ACT)
    k.srd_finish()
    Q0, Q1 = 4, 8
    KM = [12, 16]
    K1 = [20, 24]
    VV = [28, 36]
    SS = [44, 60]
    P = 76
    O = 84
    T = 100
    vKo, vKe, vVo, vNM, vML, vQo, vBig = 108, 109, 110, 111, 112, 113, 114
    k.maxv = 116
    sK, sKE, sV, sT, sFl, sCnt = 20, 21, 22, 23, 24, 25
    e(f"v_lshrrev_b32 v{T}, 6, v0")
    e("s_nop 0")
    e(f"v_readfirstlane_b32 s16, v{T}")
    e("s_nop 3")
    e("s_lshl_b32 s17, s2, 2")
    e("s_add_u32 s16, s16, s17")
    e("s_lshr_b32 s17, s16, 6")
    e("s_and_b32 s18, s16, 63")
    e(f"v_and_b32 v{T}, 31, v0")
    e(f"v_bfe_u32 v{T+1}, v0, 5, 1")
    e(f"v_mov_b32 v{vBig}, 0x80000000")
    e("s_lshl_b32 s19, s18, 5")
    e(f"v_add_u32 v{T+2}, s19, v{T}")
    e("s_movk_i32 s19, 1152")
    e(f"v_mul_lo_u32 v{T+2}, v{T+2}, s19")
    e("s_mul_i32 s19, s17, 36")
    e(f"v_add_u32 v{vQo}, s19, v{T+2}")
    e(f"v_lshl_add_u32 v{T+2}, v{T+1}, 4, v{vQo}")
    e(f"buffer_load_dwordx4 v[{Q0}:{Q0+3}], v{T+2}, s[4:7], 0 offen")
    e(f"v_cmp_eq_u32 vcc, 0, v{T+1}")
    e("s_nop 1")
    e(f"v_cndmask_b32 v{T+3}, v{vBig}, v{vQo}, vcc")
    e(f"buffer_load_dword v{Q1}, v{T+3}, s[4:7], 0 offen offset:32")
    e(f"v_cndmask_b32 v{vML}, 0, -1, vcc")
    e(f"v_mov_b32 v{Q1+1}, 0")
    e(f"v_mov_b32 v{Q1+2}, 0")
    e(f"v_mov_b32 v{Q1+3}, 0")
    e(f"v_mov_b32 v{vNM}, 0")
    e(f"v_lshlrev_b32 v{vKo}, 5, v{T}")
    e(f"v_lshl_add_u32 v{vKo}, v{T+1}, 4, v{vKo}")
    e(f"v_lshlrev_b32 v{vKe}, 2, v{T}")
    e(f"v_add_u32 v{vKe}, {WS_KE - WS_KM}, v{vKe}")
    e(f"v_and_b32 v{vVo}, 63, v0")
    e(f"v_lshlrev_b32 v{vVo}, 4, v{vVo}")
    e(f"v_add_u32 v{vVo}, {WS_VT - WS_KM}, v{vVo}")
    for b in range(2):
        e(f"v_mov_b32 v{K1[b]+1}, 0x3f80")
        e(f"v_mov_b32 v{K1[b]+2}, 0")
        e(f"v_mov_b32 v{K1[b]+3}, 0")
    for r in range(16):
        e(f"v_mov_b32 v{O+r}, 0")
    e(f"s_mov_b32 s{sT}, 0xff800000")
    e(f"s_mov_b32 s{sFl}, 0xff800000")

    def loadK(b):
        e(f"buffer_load_dwordx4 v[{KM[b]}:{KM[b]+3}], v{vKo}, s[8:11], s{sK} offen")
        e(f"buffer_load_dword v{K1[b]}, v{vKe}, s[8:11], s{sKE} offen")
        e(f"s_add_u32 s{sK}, s{sK}, 1024")
        e(f"s_add_u32 s{sKE}, s{sKE}, 128")

    def loadV(b):
        e(f"buffer_load_dwordx4 v[{VV[b]}:{VV[b]+3}], v{vVo}, s[8:11], s{sV} offen")
        e(f"buffer_load_dwordx4 v[{VV[b]+4}:{VV[b]+7}], v{vVo}, s[8:11], s{sV} offen offset:1024")
        e(f"s_add_u32 s{sV}, s{sV}, 2048")

    def qk(b):
        s = SS[b]
        e(f"v_mfma_f32_32x32x16_bf16 v[{s}:{s+15}], v[{KM[b]}:{KM[b]+3}], v[{Q0}:{Q0+3}], 0")
        e(f"v_mfma_f32_32x32x16_bf16 v[{s}:{s+15}], v[{K1[b]}:{K1[b]+3}], v[{Q1}:{Q1+3}], v[{s}:{s+15}]")

    e(f"s_mov_b32 s{sK}, 0")
    e(f"s_mov_b32 s{sKE}, 0")
    e(f"s_mov_b32 s{sV}, 0")
    loadK(0)
    loadK(1)
    loadV(0)
    e("s_waitcnt vmcnt(4)")
    qk(0)
    loadK(0)
    loadV(1)
    e(f"s_mov_b32 s{sCnt}, 0")
    loop = k.newlabel("loop")
    k.label(loop)
    rares = []
    for u in range(2):
        cur, nxt = u, 1 - u
        s = SS[cur]
        sn = SS[nxt]
        e("s_waitcnt vmcnt(6)")
        qk(nxt)
        loadK(nxt)
        e(f"v_max3_f32 v{T}, v{s}, v{s+1}, v{s+2}")
        e(f"v_max3_f32 v{T+1}, v{s+3}, v{s+4}, v{s+5}")
        e(f"v_max3_f32 v{T+2}, v{s+6}, v{s+7}, v{s+8}")
        e(f"v_max3_f32 v{T+3}, v{s+9}, v{s+10}, v{s+11}")
        e(f"v_max3_f32 v{T+4}, v{s+12}, v{s+13}, v{s+14}")
        e(f"v_max3_f32 v{T}, v{T}, v{T+1}, v{s+15}")
        e(f"v_max3_f32 v{T+2}, v{T+2}, v{T+3}, v{T+4}")
        e(f"v_max_f32 v{T}, v{T}, v{T+2}")
        e(f"v_cmp_lt_f32 vcc, s{sT}, v{T}")
        rl = k.newlabel("rare")
        bk = k.newlabel("back")
        rares.append((rl, bk, s, sn))
        e(f"s_cbranch_vccnz {rl}")
        k.label(bk)
        for r in range(16):
            e(f"v_exp_f32 v{s+r}, v{s+r}")
        e("s_nop 0")
        for r in range(8):
            e(f"v_cvt_pk_bf16_f32 v{P+r}, v{s+2*r}, v{s+2*r+1}")
        e("s_waitcnt vmcnt(6)")
        v = VV[cur]
        e(f"v_mfma_f32_32x32x16_bf16 v[{O}:{O+15}], v[{v}:{v+3}], v[{P}:{P+3}], v[{O}:{O+15}]")
        e(f"v_mfma_f32_32x32x16_bf16 v[{O}:{O+15}], v[{v+4}:{v+7}], v[{P+4}:{P+7}], v[{O}:{O+15}]")
        loadV(cur)
    e(f"s_add_u32 s{sCnt}, s{sCnt}, 2")
    e(f"s_cmp_lt_u32 s{sCnt}, 64")
    e(f"s_cbranch_scc1 {loop}")
    e("s_nop 15")
    e("s_nop 3")
    e(f"v_mov_b32 v{T}, v{O+10}")
    e(f"v_mov_b32 v{T+1}, v{O+10}")
    e("s_nop 1")
    e(f"v_permlane32_swap_b32 v{T}, v{T+1}")
    e("s_nop 1")
    e(f"v_rcp_f32 v{T}, v{T}")
    e("s_nop 0")
    for r in range(10):
        e(f"v_mul_f32 v{O+r}, v{O+r}, v{T}")
    for r in range(5):
        e(f"v_cvt_pk_bf16_f32 v{O+r}, v{O+2*r}, v{O+2*r+1}")
    e(f"v_bfe_u32 v{T+1}, v0, 5, 1")
    e(f"v_lshl_add_u32 v{T+2}, v{T+1}, 3, v{vQo}")
    e(f"buffer_store_dwordx2 v[{O}:{O+1}], v{T+2}, s[12:15], 0 offen")
    e(f"buffer_store_dwordx2 v[{O+2}:{O+3}], v{T+2}, s[12:15], 0 offen offset:16")
    e(f"v_cmp_eq_u32 vcc, 0, v{T+1}")
    e("s_nop 1")
    e(f"v_cndmask_b32 v{T+3}, v{vBig}, v{vQo}, vcc")
    e(f"buffer_store_dword v{O+4}, v{T+3}, s[12:15], 0 offen offset:32")
    e(f"s_branch {done}")
    for (rl, bk, s, sn) in rares:
        k.label(rl)
        e(f"v_mov_b32 v{T+1}, v{T}")
        e("s_nop 7")
        e(f"v_permlane32_swap_b32 v{T}, v{T+1}")
        e("s_nop 1")
        e(f"v_max_f32 v{T}, v{T}, v{T+1}")
        e(f"v_max_f32 v{T}, s{sFl}, v{T}")
        e(f"v_sub_f32 v{T+1}, v{vNM}, v{T}")
        e(f"v_cvt_pk_bf16_f32 v{T+1}, v{T+1}, v{T+1}")
        e(f"v_lshlrev_b32 v{T+1}, 16, v{T+1}")
        e(f"v_sub_f32 v{T+2}, v{vNM}, v{T+1}")
        e(f"v_mov_b32 v{vNM}, v{T+1}")
        e(f"v_lshrrev_b32 v{T+3}, 16, v{T+1}")
        e(f"v_and_b32 v{Q1+1}, v{T+3}, v{vML}")
        e(f"v_exp_f32 v{T+3}, -v{T+2}")
        e("s_nop 7")
        e(f"v_min_f32 v{T+3}, 1.0, v{T+3}")
        for r in range(16):
            e(f"v_sub_f32 v{s+r}, v{s+r}, v{T+2}")
        for r in range(16):
            e(f"v_sub_f32 v{sn+r}, v{sn+r}, v{T+2}")
        for r in range(11):
            e(f"v_mul_f32 v{O+r}, v{O+r}, v{T+3}")
        e(f"s_mov_b32 s{sT}, 0x41000000")
        e(f"s_mov_b32 s{sFl}, 0")
        e(f"s_branch {bk}")
    k.label(done)
    e("s_endpgm")
    k.maxs = 32
    k.ldsz = 0
    return k


HEADER = open("parallel_sum__grouped_kv_mqa__mixer_channel_mlp__prompt.s.ref").read().split("; Override launch")[0]


def emit(kernels, launches):
    out = [HEADER.rstrip()]
    for (kn, grid, block, lds) in launches:
        out.append(f"; @launch kernel={kn} grid=({grid},1,1) block=({block},1,1) lds={lds}")
    out.append('.amdgcn_target "amdgcn-amd-amdhsa--gfx950"')
    out.append(".text")
    for k in kernels:
        out.append(f".globl {k.name}")
        out.append(".p2align 8")
        out.append(f".type {k.name},@function")
        out.append(f"{k.name}:")
        out.append(k.text())
    out.append('.section .rodata,"a"')
    for k in kernels:
        nv = k.maxv
        acc = -(-nv // 4) * 4
        out.append(".p2align 6")
        out.append(f".amdhsa_kernel {k.name}")
        out.append(f"  .amdhsa_next_free_vgpr {nv}")
        out.append(f"  .amdhsa_next_free_sgpr {max(k.maxs, 16)}")
        out.append(f"  .amdhsa_accum_offset {acc}")
        out.append("  .amdhsa_group_segment_fixed_size 0")
        out.append("  .amdhsa_kernarg_size 104")
        out.append("  .amdhsa_user_sgpr_count 2")
        out.append("  .amdhsa_user_sgpr_kernarg_segment_ptr 1")
        out.append("  .amdhsa_system_sgpr_workgroup_id_x 1")
        out.append(".end_amdhsa_kernel")
    return "\n".join(out) + "\n"


def main():
    ln = gen_ln("ln_kernel")
    qkv = gen_qkv("qkv_kernel")
    g1 = gen_gemm1("gemm1_kernel")
    at = gen_attn("attn_kernel")
    g2 = gen_gemm2("gemm2_kernel")
    fin = gen_final("final_kernel")
    kernels = [ln, qkv, g1, at, g2, fin]
    launches = [("ln_kernel", 256, 256, 0),
                ("qkv_kernel", 160, 256, qkv.ldsz),
                ("gemm1_kernel", 256, 256, g1.ldsz),
                ("attn_kernel", 512, 256, 0),
                ("gemm2_kernel", 256, 256, g2.ldsz),
                ("final_kernel", 128, 256, fin.ldsz)]
    txt = emit(kernels, launches)
    path = sys.argv[1] if len(sys.argv) > 1 else "parallel_sum__grouped_kv_mqa__mixer_channel_mlp__prompt.s"
    open(path, "w").write(txt)
    for k in kernels:
        print(k.name, "vgpr", k.maxv, "lds", getattr(k, "ldsz", 0), "lines", len(k.L))


if __name__ == "__main__":
    main()

    open("gen_consts.py", "w").write(
        "".join(f"{n} = {globals()[n]!r}\n" for n in ["WS_XN", "WS_Y", "WS_Q", "WS_O", "WS_WKV", "WS_KM", "WS_KE", "WS_VT", "WS_H", "WS_P", "QSCALE"]))
```

```python
import math, struct, sys, os

S_TOK = 2048
D = 576
F = 4608
H = 32
DH = 18

SZ_ACT = S_TOK * D * 2
WS_XN = 0
WS_Y = WS_XN + SZ_ACT
WS_Q = WS_Y + SZ_ACT
WS_O = WS_Q + SZ_ACT
WS_WKV = WS_O + SZ_ACT
WS_KM = WS_WKV + 576 * 64 * 2
WS_KE = WS_KM + 2048 * 32
WS_VT = WS_KE + 2048 * 4
WS_H = WS_VT + 128 * 1024 + 8192
WS_P = WS_H + S_TOK * F * 2
WS_END = WS_P + 4 * S_TOK * D * 4
WS_BYTES = 268435456

KA = dict(x=0, wq=8, wk=16, wv=24, wo=32, bx=40, w1=48, b1=56, w2=64, b2=72, out=80, dbg=88, ws=96)
SZ = dict(x=SZ_ACT, wq=D * D * 2, wk=D * 18 * 2, wv=D * 18 * 2, wo=D * D * 2, w1=D * F * 2, b1=F * 2,
          w2=F * D * 2, b2=D * 2, out=SZ_ACT, ws=WS_BYTES)


def f32bits(x):
    return struct.unpack('<I', struct.pack('<f', x))[0]


def magic(div, maxval):
    for sh in range(8, 31):
        M = -(-(1 << sh) // div)
        if M * maxval >= (1 << 32):
            break
        if all(((c * M) >> sh) == c // div for c in range(maxval)):
            return M, sh
    raise ValueError("no magic")


class Kern:
    def __init__(self, name):
        self.name = name
        self.L = []
        self.maxv = 0
        self.maxs = 0
        self.lbl = 0

    def e(self, s):
        self.L.append("  " + s)

    def c(self, s):
        self.L.append("  ; " + s)

    def label(self, l):
        self.L.append(l + ":")

    def newlabel(self, p="L"):
        self.lbl += 1
        return f"{self.name}_{p}{self.lbl}"

    def srd(self, sbase, arg, off=0, size=None):
        self.e(f"s_load_dwordx2 s[{sbase}:{sbase+1}], s[0:1], {KA[arg]}")
        self._pending = getattr(self, "_pending", [])
        self._pending.append((sbase, arg, off, size))

    def srd_finish(self):
        self.e("s_waitcnt lgkmcnt(0)")
        for sbase, arg, off, size in self._pending:
            if off:
                self.e(f"s_add_u32 s{sbase}, s{sbase}, {off}")
                self.e(f"s_addc_u32 s{sbase+1}, s{sbase+1}, 0")
            sz = (SZ[arg] - off) if size is None else size
            self.e(f"s_mov_b32 s{sbase+2}, {sz}")
            self.e(f"s_mov_b32 s{sbase+3}, 0x00020000")
        self._pending = []

    def stamp(self, idx, role):
        if not os.environ.get("STAMP"):
            return
        e = self.e
        e("s_memtime s[90:91]")
        e("s_load_dwordx2 s[92:93], s[0:1], 88")
        e("s_waitcnt lgkmcnt(0)")
        e("s_mov_b32 s94, 256")
        e("s_mov_b32 s95, 0x20000")
        R0, R1 = (126, 127) if self.name.startswith("gemm") else (250, 251)
        e(f"v_and_b32 v{R1}, 511, v0")
        e(f"v_cmp_eq_u32 vcc, 0, v{R1}")
        e(f"v_mov_b32 v{R1}, {(role*16+idx)*4}")
        e(f"v_mov_b32 v{R0}, 0x80000000")
        e("s_nop 1")
        e(f"v_cndmask_b32 v{R1}, v{R0}, v{R1}, vcc")
        e(f"v_mov_b32 v{R0}, s90")
        l = self.newlabel("st")
        e("s_cmp_lg_u32 s2, 3")
        e(f"s_cbranch_scc1 {l}")
        e(f"buffer_store_dword v{R0}, v{R1}, s[92:95], 0 offen")
        self.label(l)
        self.maxv = max(self.maxv, R1 + 1)
        self.stamped = True

    def text(self):
        return "\n".join(self.L)


def vr(a, n=1):
    return f"v{a}" if n == 1 else f"v[{a}:{a+n-1}]"


def sr(a, n=1):
    return f"s{a}" if n == 1 else f"s[{a}:{a+n-1}]"


def gen_ln(name):
    k = Kern(name)
    e = k.e
    done = k.newlabel("done")
    e("s_cmp_ge_u32 s2, 256")
    e(f"s_cbranch_scc1 {done}")
    k.srd(4, "x")
    k.srd(8, "ws", WS_XN, SZ_ACT)
    k.srd(12, "ws", WS_Y, SZ_ACT)
    k.srd(16, "wk")
    k.srd(20, "wv")
    k.srd(24, "ws", WS_WKV, 576 * 64 * 2)
    k.srd_finish()
    e("v_lshrrev_b32 v1, 5, v0")
    e("s_lshl_b32 s3, s2, 3")
    e("v_add_u32 v1, s3, v1")
    e("s_movk_i32 s28, 1152")
    e("v_mul_lo_u32 v1, v1, s28")
    e("v_and_b32 v2, 31, v0")
    e("v_lshl_add_u32 v1, v2, 2, v1")
    X = 4
    for i in range(9):
        e(f"buffer_load_dword v{X+i}, v1, s[4:7], 0 offen offset:{128*i}")
    skip = k.newlabel("skipw")
    e("s_cmp_ge_u32 s2, 144")
    e(f"s_cbranch_scc1 {skip}")
    e("v_lshrrev_b32 v60, 6, v0")
    e("s_lshl_b32 s3, s2, 2")
    e("v_add_u32 v60, s3, v60")
    e("v_and_b32 v61, 63, v0")
    e("v_mul_u32_u24 v62, 36, v60")
    e("v_lshl_add_u32 v63, v61, 1, v62")
    e("v_mov_b32 v58, 0x80000000")
    e("v_cmp_gt_u32 vcc, 18, v61")
    e("s_nop 1")
    e("v_cndmask_b32 v63, v58, v63, vcc")
    e("v_subrev_u32 v59, 32, v61")
    e("v_lshl_add_u32 v57, v59, 1, v62")
    e("v_cmp_gt_u32 vcc, 18, v59")
    e("s_nop 1")
    e("v_cndmask_b32 v57, v58, v57, vcc")
    e("buffer_load_ushort v56, v63, s[16:19], 0 offen")
    e("buffer_load_ushort v55, v57, s[20:23], 0 offen")
    e("v_lshlrev_b32 v60, 7, v60")
    e("v_lshl_add_u32 v60, v61, 1, v60")
    e("s_waitcnt vmcnt(0)")
    e("v_or_b32 v56, v56, v55")
    e("buffer_store_short v56, v60, s[24:27], 0 offen")
    k.label(skip)
    e("s_waitcnt vmcnt(0)")
    E = 16
    T = 40

    def unpack(src0):
        for i in range(9):
            e(f"v_lshlrev_b32 v{E+2*i}, 16, v{src0+i}")
            e(f"v_and_b32 v{E+2*i+1}, 0xffff0000, v{src0+i}")

    def reduce32(r, t):
        for mod in ("quad_perm:[1,0,3,2]", "quad_perm:[2,3,0,1]", "row_half_mirror", "row_mirror"):
            e("s_nop 1")
            e(f"v_add_f32_dpp v{t}, v{r}, v{r} {mod} row_mask:0xf bank_mask:0xf")
            e(f"v_mov_b32 v{r}, v{t}")
        e(f"ds_swizzle_b32 v{t}, v{r} offset:0x401F")
        e("s_waitcnt lgkmcnt(0)")
        e(f"v_add_f32 v{r}, v{r}, v{t}")

    def bf16r(r):
        e(f"v_cvt_pk_bf16_f32 v{r}, v{r}, v{r}")
        e(f"v_lshlrev_b32 v{r}, 16, v{r}")

    def layernorm(dst):
        e(f"v_add_f32 v{T}, v{E}, v{E+1}")
        for i in range(2, 18):
            e(f"v_add_f32 v{T}, v{T}, v{E+i}")
        reduce32(T, T + 1)
        e(f"v_mul_f32 v{T}, 0x{f32bits(1.0/576):08x}, v{T}")
        e(f"v_sub_f32 v{T+2}, v{E}, v{T}")
        e(f"v_mul_f32 v{T+3}, v{T+2}, v{T+2}")
        for i in range(1, 18):
            e(f"v_sub_f32 v{T+2}, v{E+i}, v{T}")
            e(f"v_fmac_f32 v{T+3}, v{T+2}, v{T+2}")
        reduce32(T + 3, T + 1)
        e(f"v_mul_f32 v{T+3}, 0x{f32bits(1.0/576):08x}, v{T+3}")
        bf16r(T)
        bf16r(T + 3)
        e(f"v_add_f32 v{T+3}, 0x{f32bits(1e-5):08x}, v{T+3}")
        bf16r(T + 3)
        e(f"v_sqrt_f32 v{T+3}, v{T+3}")
        e("s_nop 0")
        bf16r(T + 3)
        e(f"v_rcp_f32 v{T+3}, v{T+3}")
        for i in range(9):
            e(f"v_sub_f32 v{T+4}, v{E+2*i}, v{T}")
            e(f"v_sub_f32 v{T+5}, v{E+2*i+1}, v{T}")
            e(f"v_cvt_pk_bf16_f32 v{T+4}, v{T+4}, v{T+5}")
            e(f"v_and_b32 v{T+5}, 0xffff0000, v{T+4}")
            e(f"v_lshlrev_b32 v{T+4}, 16, v{T+4}")
            e(f"v_mul_f32 v{T+4}, v{T+4}, v{T+3}")
            e(f"v_mul_f32 v{T+5}, v{T+5}, v{T+3}")
            e(f"v_cvt_pk_bf16_f32 v{dst+i}, v{T+4}, v{T+5}")

    unpack(X)
    layernorm(X)
    for i in range(9):
        e(f"buffer_store_dword v{X+i}, v1, s[8:11], 0 offen offset:{128*i}")
    unpack(X)
    Y = 64
    layernorm(Y)
    for i in range(9):
        e(f"buffer_store_dword v{Y+i}, v1, s[12:15], 0 offen offset:{128*i}")
    k.label(done)
    e("s_endpgm")
    k.maxv = 80
    k.maxs = 32
    return k


class Gemm:
    def __init__(self, k, cfg):
        self.k = k
        self.__dict__.update(cfg)
        self.TM = self.wm * self.mt * 16
        self.RS = self.nt * 32
        self.gap = cfg.get("gap", 128)
        self.CGv = 8 * self.RS // 16
        self.CG = self.CGv + self.gap // 16
        self.xbytes = self.TM * 128
        nch = 8 * self.CG
        self.NWV = self.wm * self.wk
        self.nWtot = -(-nch // 64)
        self.nWd = -(-self.nWtot // self.NWV)
        self.wbytes = self.nWtot * 1024
        self.stage_bytes = self.xbytes + self.wbytes
        self.nXd = self.xbytes // 1024 // self.NWV
        assert self.nXd % 2 == 0
        self.lds = self.nbuf * self.stage_bytes
        assert self.lds <= 163840

    def body(self, sX, sW, s_xoff, s_woff, vbase, acc_init=None):
        k = self.k
        e = k.e
        mt, nt, wm, wk, NB = self.mt, self.nt, self.wm, self.wk, self.nbuf
        v = vbase
        self.ACC = ACC = v; v += 4 * mt * nt
        nxb = 2 if wk == 1 else 1
        XF = [v + 4 * mt * i for i in range(nxb)]; v += 4 * mt * nxb
        NW = cfg_nw = self.__dict__.get('nw', 4)
        WF = [v + 4 * i for i in range(NW)]; v += 4 * NW
        vXa = [[v + 2 * b, v + 2 * b + 1] for b in range(NB)]; v += 2 * NB
        vWa = [v + b for b in range(NB)]; v += NB
        vXg = [v, v + 1]; v += 2
        vWg = [v + i for i in range(self.nWd)]; v += self.nWd
        vt = [v, v + 1, v + 2, v + 3]; v += 4
        self.vfree = v - 4
        self.vt = vt
        k.maxv = max(k.maxv, v)
        SW, SWM, SWK, SXB, SLX, SLW, ST = 40, 41, 42, 43, 44, 45, 46
        self.s_wave, self.s_wm, self.s_wk = SW, SWM, SWK
        k.stamp(0, 0)
        e(f"v_lshrrev_b32 v{vt[0]}, 6, v0")
        e("s_nop 0")
        e(f"v_readfirstlane_b32 s{SW}, v{vt[0]}")
        e(f"v_and_b32 v{vt[1]}, 63, v0")
        lane = vt[1]
        e("s_nop 2")
        if wk == 1:
            e(f"s_mov_b32 s{SWM}, s{SW}")
            e(f"s_mov_b32 s{SWK}, 0")
        else:
            assert wk == 2 and wm in (2, 4)
            e(f"s_and_b32 s{SWM}, s{SW}, {wm - 1}")
            e(f"s_lshr_b32 s{SWK}, s{SW}, {1 if wm == 2 else 2}")
        e(f"v_lshrrev_b32 v{vt[0]}, 3, v{lane}")
        e(f"s_mov_b32 s{ST}, {self.XS}")
        e(f"v_mul_lo_u32 v{vt[0]}, v{vt[0]}, s{ST}")
        e(f"v_lshrrev_b32 v{vt[2]}, 4, v{lane}")
        e(f"v_and_b32 v{vt[3]}, 7, v{lane}")
        e(f"v_xor_b32 v{vt[2]}, v{vt[2]}, v{vt[3]}")
        e(f"v_lshl_add_u32 v{vXg[0]}, v{vt[2]}, 4, v{vt[0]}")
        e(f"v_xor_b32 v{vt[2]}, 4, v{vt[2]}")
        e(f"v_lshl_add_u32 v{vXg[1]}, v{vt[2]}, 4, v{vt[0]}")
        rows_pw = self.nXd * 8
        e(f"s_mul_i32 s{SXB}, s{SW}, {rows_pw * self.XS}")
        e(f"s_add_u32 s{SXB}, s{SXB}, s{s_xoff}")
        e(f"s_mul_i32 s{SLX}, s{SW}, {self.nXd * 1024}")
        e(f"s_lshl_b32 s{SLW}, s{SW}, 10")
        e(f"s_add_u32 s{SLW}, s{SLW}, {self.xbytes}")
        nch_max = self.nWd * self.NWV * 64
        M1, sh1 = magic(self.CG, nch_max)
        M2, sh2 = magic(self.RS // 16, self.CG)
        for i in range(self.nWd):
            e(f"s_lshl_b32 s{ST}, s{SW}, 6")
            e(f"s_add_u32 s{ST}, s{ST}, {i * 64 * self.NWV}")
            e(f"v_add_u32 v{vt[0]}, s{ST}, v{lane}")
            e(f"s_mov_b32 s{ST}, {M1}")
            e(f"v_mul_lo_u32 v{vt[2]}, v{vt[0]}, s{ST}")
            e(f"v_lshrrev_b32 v{vt[2]}, {sh1}, v{vt[2]}")
            e(f"v_mul_u32_u24 v{vt[3]}, {self.CG}, v{vt[2]}")
            e(f"v_sub_u32 v{vt[0]}, v{vt[0]}, v{vt[3]}")
            e(f"v_mul_u32_u24 v{vt[3]}, {M2}, v{vt[0]}")
            e(f"v_lshrrev_b32 v{vt[3]}, {sh2}, v{vt[3]}")
            g = vWg[i]
            e(f"v_mul_u32_u24 v{g}, {self.RS // 16}, v{vt[3]}")
            e(f"v_sub_u32 v{g}, v{vt[0]}, v{g}")
            e(f"v_lshlrev_b32 v{g}, 4, v{g}")
            e(f"v_lshl_add_u32 v{vt[3]}, v{vt[2]}, 3, v{vt[3]}")
            e(f"s_mov_b32 s{ST}, {self.WSb}")
            e(f"v_mul_lo_u32 v{vt[3]}, v{vt[3]}, s{ST}")
            e(f"v_add_u32 v{g}, v{g}, v{vt[3]}")
            e(f"v_cmp_gt_u32 vcc, {self.CGv}, v{vt[0]}")
            e(f"v_cmp_gt_u32 s[48:49], 8, v{vt[2]}")
            e("s_nop 1")
            e("s_and_b64 vcc, vcc, s[48:49]")
            e(f"v_mov_b32 v{vt[3]}, 0x80000000")
            e("s_nop 1")
            e(f"v_cndmask_b32 v{g}, v{vt[3]}, v{g}, vcc")

        def dma_list(st):
            buf = (st % NB) * self.stage_bytes
            out = []
            for i in range(self.nXd):
                out.append([f"s_add_u32 m0, s{SLX}, {buf + i * 1024}",
                            f"s_add_u32 s{ST}, s{SXB}, {i * 8 * self.XS + st * 128}",
                            f"buffer_load_dwordx4 v{vXg[i & 1]}, s[{sX}:{sX+3}], s{ST} offen lds"])
            for i in range(self.nWd):
                g = [f"s_add_u32 m0, s{SLW}, {buf + i * self.NWV * 1024}",
                     f"s_add_u32 s{ST}, s{s_woff}, {st * 64 * self.WSb}",
                     f"buffer_load_dwordx4 v{vWg[i]}, s[{sW}:{sW+3}], s{ST} offen lds"]
                nval = self.nWtot - i * self.NWV
                if nval < self.NWV:
                    lb = k.newlabel("wsk")
                    g = [f"s_cmp_ge_u32 s{SW}, {nval}", f"s_cbranch_scc1 {lb}"] + g + [f"{lb}:"]
                out.append(g)
            return out

        nD = self.nXd + self.nWtot // self.NWV
        self.pro_dma = min(NB - 1, self.nst) * nD
        if getattr(self, "pre_init", None):
            self.pre_init(self)
        for st in range(min(NB - 1, self.nst)):
            for g in dma_list(st):
                for l in g:
                    e(l)
        e(f"v_and_b32 v{vt[0]}, 15, v{lane}")
        e(f"v_lshrrev_b32 v{vt[2]}, 4, v{lane}")
        e(f"v_lshrrev_b32 v{vt[3]}, 1, v{vt[0]}")
        e(f"v_xor_b32 v{vt[3]}, v{vt[3]}, v{vt[2]}")
        e(f"v_lshlrev_b32 v{vt[0]}, 7, v{vt[0]}")
        e(f"v_lshl_add_u32 v{vXa[0][0]}, v{vt[3]}, 4, v{vt[0]}")
        e(f"s_mul_i32 s{ST}, s{SWM}, {mt * 16 * 128}")
        e(f"v_add_u32 v{vXa[0][0]}, s{ST}, v{vXa[0][0]}")
        if wk == 2:
            e(f"s_lshl_b32 s{ST}, s{SWK}, 6")
            e(f"v_xor_b32 v{vXa[0][0]}, s{ST}, v{vXa[0][0]}")
        e(f"v_xor_b32 v{vXa[0][1]}, 64, v{vXa[0][0]}")
        e(f"v_bfe_u32 v{vt[0]}, v{lane}, 2, 2")
        e(f"v_lshl_add_u32 v{vt[0]}, v{vt[2]}, 3, v{vt[0]}")
        e(f"v_mul_u32_u24 v{vt[0]}, {self.RS}, v{vt[0]}")
        e(f"v_mul_u32_u24 v{vt[3]}, {self.gap}, v{vt[2]}")
        e(f"v_add_u32 v{vt[0]}, v{vt[0]}, v{vt[3]}")
        e(f"v_and_b32 v{vt[3]}, 3, v{lane}")
        e(f"v_lshl_add_u32 v{vWa[0]}, v{vt[3]}, 3, v{vt[0]}")
        KSW = 32 * self.RS + 4 * self.gap
        if wk == 2:
            e(f"s_mul_i32 s{ST}, s{SWK}, {KSW}")
            e(f"s_add_u32 s{ST}, s{ST}, {self.xbytes}")
        else:
            e(f"s_mov_b32 s{ST}, {self.xbytes}")
        e(f"v_add_u32 v{vWa[0]}, s{ST}, v{vWa[0]}")
        for b in range(1, NB):
            e(f"v_add_u32 v{vXa[b][0]}, {b * self.stage_bytes}, v{vXa[0][0]}")
            e(f"v_add_u32 v{vXa[b][1]}, {b * self.stage_bytes}, v{vXa[0][1]}")
            e(f"v_add_u32 v{vWa[b]}, {b * self.stage_bytes}, v{vWa[0]}")
        if acc_init is None:
            for r in range(4 * mt * nt):
                e(f"v_mov_b32 v{ACC + r}, 0")
        else:
            acc_init(self)
        extra_vm = getattr(self, "extra_vm", 0)
        fifo = []

        def issue(idn, line):
            e(line)
            fifo.append(idn)

        def need(ids):
            pos = max((fifo.index(i) for i in ids if i in fifo), default=-1)
            if pos >= 0:
                n = len(fifo) - 1 - pos
                e(f"s_waitcnt lgkmcnt({min(n, 15)})")
                del fifo[:pos + 1]

        PF = NW - 1
        nks = 2 if wk == 1 else 1
        nsteps = nks * nt
        for st in range(self.nst):
            aX = vXa[st % NB]
            aW = vWa[st % NB]
            inflight = min(NB - 2, self.nst - 1 - st)
            e(f"s_waitcnt vmcnt({min(63, inflight * nD)})")
            e("s_barrier")
            if st < 13:
                k.stamp(1 + st, 0)
            dmas = dma_list(st + NB - 1) if st + NB - 1 < self.nst else []
            if os.environ.get("G_NODMA"):
                dmas = []

            def rdX(ks):
                for i in range(mt):
                    issue(("X", ks, i), f"ds_read_b128 v[{XF[ks]+4*i}:{XF[ks]+4*i+3}], v{aX[ks]} offset:{2048*i}")

            def rdW(t):
                ks, j = divmod(t, nt)
                w = WF[t % NW]
                o = ks * KSW + 32 * j
                issue(("W", t, 0), f"ds_read_b64_tr_b16 v[{w}:{w+1}], v{aW} offset:{o}")
                issue(("W", t, 1), f"ds_read_b64_tr_b16 v[{w+2}:{w+3}], v{aW} offset:{o + 4*self.RS}")

            rdW(0)
            rdX(0)
            for t in range(1, min(PF, nsteps)):
                rdW(t)
            per = -(-len(dmas) // nsteps)
            for t in range(nsteps):
                ks, j = divmod(t, nt)
                if t + PF < nsteps:
                    rdW(t + PF)
                if nks == 2 and t == min(2, nt - 1):
                    rdX(1)
                for _ in range(per):
                    if dmas:
                        for l in dmas.pop(0):
                            e(l)
                ids = [("W", t, 0), ("W", t, 1)]
                if j == 0:
                    ids += [("X", ks, i) for i in range(mt)]
                need(ids)
                w = WF[t % NW]
                for i in range(mt if not os.environ.get("G_NOMFMA") else 0):
                    a = ACC + 4 * (i * nt + j)
                    e(f"v_mfma_f32_16x16x32_bf16 v[{a}:{a+3}], v[{w}:{w+3}], v[{XF[ks]+4*i}:{XF[ks]+4*i+3}], v[{a}:{a+3}]")
            assert not dmas
            assert not fifo
        e("s_nop 7")
        e("s_nop 7")
        k.stamp(14, 0)


GELU_C0 = -2.0 * math.log2(math.e) * math.sqrt(2.0 / math.pi)
GELU_C1 = GELU_C0 * 0.044715
QSCALE = math.log2(math.e) / math.sqrt(18.0)


def lane_consts(k, g, v_tok, v_g):
    k.e(f"v_and_b32 v{v_tok}, 15, v0")
    k.e(f"v_bfe_u32 v{v_g}, v0, 4, 2")


def gen_qkv(name):
    k = Kern(name)
    e = k.e
    done = k.newlabel("done")
    kvl = k.newlabel("kv")
    e("s_cmp_ge_u32 s2, 160")
    e(f"s_cbranch_scc1 {done}")
    k.srd(4, "ws", WS_XN, SZ_ACT)
    k.srd(8, "wq")
    k.srd(12, "ws", WS_Q, SZ_ACT)
    k.srd(16, "ws", WS_WKV, 576 * 64 * 2)
    k.srd(20, "ws", WS_KM, WS_H - WS_KM)
    k.srd_finish()
    e("s_cmp_ge_u32 s2, 128")
    e(f"s_cbranch_scc1 {kvl}")
    g = Gemm(k, dict(mt=1, nt=9, wm=4, wk=1, nst=9, XS=1152, WSb=1152, nbuf=5, nw=8))
    e("s_lshr_b32 s30, s2, 2")
    e("s_and_b32 s31, s2, 3")
    e(f"s_mul_i32 s32, s30, {64 * 1152}")
    e(f"s_mul_i32 s33, s31, {144 * 2}")
    g.body(4, 8, 32, 33, 4)
    vt = g.vfree
    lane_consts(k, g, vt, vt + 1)
    e(f"s_lshl_b32 s34, s{g.s_wm}, 4")
    e(f"v_add_u32 v{vt}, s34, v{vt}")
    e(f"s_movk_i32 s34, 1152")
    e(f"v_mul_lo_u32 v{vt}, v{vt}, s34")
    e(f"v_lshl_add_u32 v{vt}, v{vt+1}, 3, v{vt}")
    e(f"s_add_u32 s34, s32, s33")
    e(f"s_mov_b32 s35, 0x{f32bits(QSCALE):08x}")
    for j in range(9):
        a = g.ACC + 4 * j
        for r in range(4):
            e(f"v_mul_f32 v{a+r}, s35, v{a+r}")
        e(f"v_cvt_pk_bf16_f32 v{a}, v{a}, v{a+1}")
        e(f"v_cvt_pk_bf16_f32 v{a+1}, v{a+2}, v{a+3}")
        e(f"buffer_store_dwordx2 v[{a}:{a+1}], v{vt}, s[12:15], s34 offen offset:{32*j}")
    e(f"s_branch {done}")
    k.label(kvl)
    g2 = Gemm(k, dict(mt=1, nt=4, wm=4, wk=1, nst=9, XS=1152, WSb=128, gap=32, nbuf=5))
    e("s_sub_u32 s30, s2, 128")
    e(f"s_mul_i32 s32, s30, {64 * 1152}")
    e("s_mov_b32 s33, 0")
    g2.body(4, 16, 32, 33, 4)
    vt = g2.vfree
    A = g2.ACC
    lane_consts(k, g2, vt, vt + 1)
    e(f"s_lshl_b32 s34, s{g2.s_wm}, 4")
    e(f"s_lshl_b32 s35, s30, 6")
    e(f"s_add_u32 s34, s34, s35")
    e(f"v_add_u32 v{vt}, s34, v{vt}")
    tk, gg, t2, t3 = vt, vt + 1, vt + 2, vt + 3
    big = A + 16
    e(f"v_mov_b32 v{big}, 0x80000000")
    e(f"v_lshlrev_b32 v{t2}, 5, v{tk}")
    e(f"v_lshl_add_u32 v{t2}, v{gg}, 3, v{t2}")
    e(f"v_cvt_pk_bf16_f32 v{A}, v{A}, v{A+1}")
    e(f"v_cvt_pk_bf16_f32 v{A+1}, v{A+2}, v{A+3}")
    e(f"buffer_store_dwordx2 v[{A}:{A+1}], v{t2}, s[20:23], 0 offen")
    e(f"v_cmp_eq_u32 vcc, 0, v{gg}")
    e(f"v_lshlrev_b32 v{t2}, 2, v{tk}")
    e(f"v_add_u32 v{t2}, {WS_KE - WS_KM}, v{t2}")
    e(f"v_cndmask_b32 v{t2}, v{big}, v{t2}, vcc")
    e(f"v_cvt_pk_bf16_f32 v{A+4}, v{A+4}, v{A+5}")
    e(f"buffer_store_dword v{A+4}, v{t2}, s[20:23], 0 offen")
    e(f"v_lshrrev_b32 v{t2}, 4, v{tk}")
    e(f"v_lshlrev_b32 v{t2}, 10, v{t2}")
    e(f"v_bfe_u32 v{t3}, v{tk}, 2, 1")
    e(f"v_lshl_add_u32 v{t2}, v{t3}, 9, v{t2}")
    e(f"v_and_b32 v{t3}, 3, v{tk}")
    e(f"v_lshl_add_u32 v{t2}, v{t3}, 1, v{t2}")
    e(f"v_bfe_u32 v{t3}, v{tk}, 3, 1")
    e(f"v_lshl_add_u32 v{t2}, v{t3}, 3, v{t2}")
    e(f"v_add_u32 v{t2}, {WS_VT - WS_KM}, v{t2}")
    e(f"v_lshl_add_u32 v{t3}, v{gg}, 6, v{t2}")
    e(f"v_cvt_pk_bf16_f32 v{A+8}, v{A+8}, v{A+9}")
    e(f"v_cvt_pk_bf16_f32 v{A+9}, v{A+10}, v{A+11}")
    e(f"buffer_store_short v{A+8}, v{t3}, s[20:23], 0 offen")
    e(f"buffer_store_short_d16_hi v{A+8}, v{t3}, s[20:23], 0 offen offset:16")
    e(f"buffer_store_short v{A+9}, v{t3}, s[20:23], 0 offen offset:32")
    e(f"buffer_store_short_d16_hi v{A+9}, v{t3}, s[20:23], 0 offen offset:48")
    e(f"v_cndmask_b32 v{t3}, v{big}, v{t2}, vcc")
    e(f"v_cvt_pk_bf16_f32 v{A+12}, v{A+12}, v{A+13}")
    e(f"v_mov_b32 v{A+13}, 0x3f80")
    e(f"buffer_store_short v{A+12}, v{t3}, s[20:23], 0 offen offset:256")
    e(f"buffer_store_short_d16_hi v{A+12}, v{t3}, s[20:23], 0 offen offset:272")
    e(f"buffer_store_short v{A+13}, v{t3}, s[20:23], 0 offen offset:288")
    k.label(done)
    e("s_endpgm")
    k.maxs = 60
    k.ldsz = max(g.lds, g2.lds)
    return k


def gen_gemm1(name):
    k = Kern(name)
    e = k.e
    done = k.newlabel("done")
    e("s_cmp_ge_u32 s2, 256")
    e(f"s_cbranch_scc1 {done}")
    attl = k.newlabel("att")
    split_roles(k, attl)
    k.srd(4, "ws", WS_Y, SZ_ACT)
    k.srd(8, "w1")
    k.srd(12, "ws", WS_H, S_TOK * F * 2)
    k.srd(16, "b1")
    k.srd_finish()
    g = Gemm(k, dict(mt=2, nt=9, wm=8, wk=1, nst=9, XS=1152, WSb=9216, nbuf=3))
    e("s_and_b32 s34, s2, 1")
    e("s_lshl_b32 s34, s34, 2")
    e("s_bfe_u32 s35, s2, 0x20003")
    e("s_add_u32 s30, s34, s35")
    e("s_bfe_u32 s34, s2, 0x20001")
    e("s_lshl_b32 s34, s34, 3")
    e("s_lshr_b32 s35, s2, 5")
    e("s_add_u32 s31, s34, s35")
    e(f"s_mul_i32 s32, s30, {256 * 1152}")
    e(f"s_mul_i32 s33, s31, {144 * 2}")

    def pre(g):
        t = g.vt
        e(f"v_bfe_u32 v{t[0]}, v0, 4, 2")
        e(f"v_lshlrev_b32 v{t[0]}, 3, v{t[0]}")
        A = g.ACC
        for j in range(9):
            e(f"buffer_load_dwordx2 v[{A+4*j}:{A+4*j+1}], v{t[0]}, s[16:19], s33 offen offset:{32*j}")
    g.pre_init = pre

    def init(g):
        A = g.ACC
        e(f"s_waitcnt vmcnt({g.pro_dma})")
        for j in range(9):
            a = A + 4 * j
            e(f"v_and_b32 v{a+3}, 0xffff0000, v{a+1}")
            e(f"v_lshlrev_b32 v{a+2}, 16, v{a+1}")
            e(f"v_and_b32 v{a+1}, 0xffff0000, v{a}")
            e(f"v_lshlrev_b32 v{a}, 16, v{a}")
        for i in range(1, 2):
            for r in range(36):
                e(f"v_mov_b32 v{A + 36*i + r}, v{A + r}")

    g.body(4, 8, 32, 33, 4, acc_init=init)
    vt = g.vfree
    lane_consts(k, g, vt, vt + 1)
    e(f"s_lshl_b32 s34, s{g.s_wm}, 5")
    e(f"s_lshl_b32 s35, s30, 8")
    e(f"s_add_u32 s34, s34, s35")
    e(f"v_add_u32 v{vt}, s34, v{vt}")
    e(f"s_movk_i32 s34, 9216")
    e(f"v_mul_lo_u32 v{vt}, v{vt}, s34")
    e(f"v_lshl_add_u32 v{vt}, v{vt+1}, 3, v{vt}")
    e(f"s_mov_b32 s36, 0x{f32bits(GELU_C0):08x}")
    e(f"s_mov_b32 s37, 0x{f32bits(GELU_C1):08x}")
    e(f"v_mov_b32 v{vt+1}, s36")
    t0, t1 = vt + 2, vt + 3
    for i in range(2 if not os.environ.get("G_NOEPI") else 0):
        e(f"s_add_u32 s34, s33, {i * 16 * 9216}")
        for j in range(9):
            a = g.ACC + 4 * (i * 9 + j)
            for r in range(0, 4, 2):
                x0, x1 = a + r, a + r + 1
                e(f"v_mul_f32 v{t0}, v{x0}, v{x0}")
                e(f"v_mul_f32 v{t1}, v{x1}, v{x1}")
                e(f"v_fma_f32 v{t0}, v{t0}, s37, v{vt+1}")
                e(f"v_fma_f32 v{t1}, v{t1}, s37, v{vt+1}")
                e(f"v_mul_f32 v{t0}, v{t0}, v{x0}")
                e(f"v_mul_f32 v{t1}, v{t1}, v{x1}")
                e(f"v_exp_f32 v{t0}, v{t0}")
                e(f"v_exp_f32 v{t1}, v{t1}")
                e(f"v_add_f32 v{t0}, 1.0, v{t0}")
                e(f"v_add_f32 v{t1}, 1.0, v{t1}")
                e(f"v_rcp_f32 v{t0}, v{t0}")
                e(f"v_rcp_f32 v{t1}, v{t1}")
                e(f"v_mul_f32 v{x0}, v{x0}, v{t0}")
                e(f"v_mul_f32 v{x1}, v{x1}, v{t1}")
            e(f"v_cvt_pk_bf16_f32 v{a}, v{a}, v{a+1}")
            e(f"v_cvt_pk_bf16_f32 v{a+1}, v{a+2}, v{a+3}")
            e(f"buffer_store_dwordx2 v[{a}:{a+1}], v{vt}, s[12:15], s34 offen offset:{32*j}")
    k.stamp(15, 0)
    e("s_endpgm")
    k.label(attl)
    attn_body(k, 0, mask_of([0, 2, 4, 6, 8, 10, 12, 14, 16]), done)
    k.label(done)
    e("s_endpgm")
    k.maxs = 60
    k.ldsz = g.lds
    return k


def gen_gemm2(name):
    k = Kern(name)
    e = k.e
    done = k.newlabel("done")
    e("s_cmp_ge_u32 s2, 256")
    e(f"s_cbranch_scc1 {done}")
    k.srd(4, "ws", WS_H, S_TOK * F * 2)
    k.srd(8, "w2")
    k.srd(12, "ws", WS_P, 4 * S_TOK * D * 4)
    k.srd_finish()
    g = Gemm(k, dict(mt=2, nt=9, wm=4, wk=2, nst=18, XS=9216, WSb=1152, nbuf=4))
    e("s_and_b32 s34, s2, 1")
    e("s_lshl_b32 s34, s34, 3")
    e("s_bfe_u32 s35, s2, 0x30003")
    e("s_add_u32 s30, s34, s35")
    e("s_lshr_b32 s36, s2, 6")
    e("s_bfe_u32 s37, s2, 0x20001")
    e(f"s_mul_i32 s32, s30, {128 * 9216}")
    e(f"s_mul_i32 s34, s37, {1152 * 2}")
    e("s_add_u32 s32, s32, s34")
    e(f"s_mul_i32 s33, s37, {1152 * 1152}")
    e(f"s_mul_i32 s34, s36, {144 * 2}")
    e("s_add_u32 s33, s33, s34")
    g.body(4, 8, 32, 33, 4)
    vt = g.vfree
    A = g.ACC
    e("s_barrier")
    e(f"v_and_b32 v{vt}, 63, v0")
    e(f"v_lshlrev_b32 v{vt}, 4, v{vt}")
    e(f"s_mul_i32 s34, s{g.s_wave}, {9 * 1024}")
    e(f"v_add_u32 v{vt+1}, s34, v{vt}")
    e(f"s_xor_b32 s35, s{g.s_wave}, 4")
    e(f"s_mul_i32 s34, s35, {9 * 1024}")
    e(f"v_add_u32 v{vt+2}, s34, v{vt}")
    l1 = k.newlabel("wk1")
    l2 = k.newlabel("join")
    e(f"s_cmp_eq_u32 s{g.s_wk}, 1")
    e(f"s_cbranch_scc1 {l1}")
    for q in range(9):
        e(f"ds_write_b128 v{vt+1}, v[{A+36+4*q}:{A+36+4*q+3}] offset:{1024*q}")
    e(f"s_branch {l2}")
    k.label(l1)
    for q in range(9):
        e(f"ds_write_b128 v{vt+1}, v[{A+4*q}:{A+4*q+3}] offset:{1024*q}")
    e("s_nop 1")
    for r in range(36):
        e(f"v_mov_b32 v{A+r}, v{A+36+r}")
    k.label(l2)
    e("s_waitcnt lgkmcnt(0)")
    e("s_barrier")
    for q in range(9):
        e(f"ds_read_b128 v[{A+36+4*q}:{A+36+4*q+3}], v{vt+2} offset:{1024*q}")
    lane_consts(k, g, vt, vt + 1)
    e(f"s_lshl_b32 s34, s{g.s_wm}, 5")
    e(f"s_lshl_b32 s35, s{g.s_wk}, 4")
    e(f"s_add_u32 s34, s34, s35")
    e(f"s_lshl_b32 s35, s30, 7")
    e(f"s_add_u32 s34, s34, s35")
    e(f"v_add_u32 v{vt}, s34, v{vt}")
    e(f"s_movk_i32 s34, 2304")
    e(f"v_mul_lo_u32 v{vt}, v{vt}, s34")
    e(f"v_lshl_add_u32 v{vt}, v{vt+1}, 4, v{vt}")
    e(f"s_mul_i32 s34, s37, {S_TOK * D * 4}")
    e(f"s_mul_i32 s35, s36, {144 * 4}")
    e(f"s_add_u32 s34, s34, s35")
    for q in range(9):
        e(f"s_waitcnt lgkmcnt({8 - q})")
        a = A + 4 * q
        for r in range(4):
            e(f"v_add_f32 v{a+r}, v{a+r}, v{a+36+r}")
        e(f"buffer_store_dwordx4 v[{a}:{a+3}], v{vt}, s[12:15], s34 offen offset:{64*q}")
    k.stamp(15, 0)
    k.label(done)
    e("s_endpgm")
    k.maxs = 60
    k.ldsz = g.lds
    return k


def gen_final(name):
    k = Kern(name)
    e = k.e
    done = k.newlabel("done")
    e("s_cmp_ge_u32 s2, 128")
    e(f"s_cbranch_scc1 {done}")
    k.srd(4, "ws", WS_O, SZ_ACT)
    k.srd(8, "wo")
    k.srd(12, "ws", WS_P, 4 * S_TOK * D * 4)
    k.srd(16, "x")
    k.srd(20, "b2")
    k.srd(24, "out")
    k.srd_finish()
    g = Gemm(k, dict(mt=1, nt=9, wm=4, wk=1, nst=9, XS=1152, WSb=1152, nbuf=5, nw=8))
    e("s_lshr_b32 s30, s2, 2")
    e("s_and_b32 s31, s2, 3")
    e(f"s_mul_i32 s32, s30, {64 * 1152}")
    e(f"s_mul_i32 s33, s31, {144 * 2}")
    EB = 108
    LB = 112
    k.maxv = max(k.maxv, LB + 9 * 16)

    def pre(g):
        lane_consts(k, g, EB, EB + 1)
        e(f"v_bfe_u32 v{EB+2}, v0, 6, 2")
        e(f"v_lshl_add_u32 v{EB}, v{EB+2}, 4, v{EB}")
        e(f"s_movk_i32 s34, 1152")
        e(f"v_mul_lo_u32 v{EB+2}, v{EB}, s34")
        e(f"v_lshl_add_u32 v{EB+2}, v{EB+1}, 3, v{EB+2}")
        e(f"v_lshlrev_b32 v{EB+3}, 1, v{EB+2}")
        e(f"v_lshlrev_b32 v{EB+1}, 3, v{EB+1}")
        e(f"s_add_u32 s34, s32, s33")
        e(f"s_lshl_b32 s35, s34, 1")
        for j in range(9):
            B = LB + 16 * j
            e(f"buffer_load_dwordx2 v[{B}:{B+1}], v{EB+2}, s[16:19], s34 offen offset:{32*j}")
            e(f"buffer_load_dwordx2 v[{B+2}:{B+3}], v{EB+1}, s[20:23], s33 offen offset:{32*j}")
            for s_ in range(4):
                e(f"s_add_u32 s36, s35, {s_ * S_TOK * D * 4}")
                dst = g.ACC + 4 * j if s_ == 0 else B + 4 * s_
                e(f"buffer_load_dwordx4 v[{dst}:{dst+3}], v{EB+3}, s[12:15], s36 offen offset:{64*j}")
    g.pre_init = pre

    def init(g):
        e(f"s_waitcnt vmcnt({g.pro_dma})")
        for j in range(9):
            B = LB + 16 * j
            a = g.ACC + 4 * j
            for s_ in (1, 2, 3):
                for r in range(4):
                    e(f"v_add_f32 v{a+r}, v{a+r}, v{B+4*s_+r}")
            for src in (B, B + 2):
                e(f"v_lshlrev_b32 v{B+4}, 16, v{src}")
                e(f"v_and_b32 v{B+5}, 0xffff0000, v{src}")
                e(f"v_lshlrev_b32 v{B+6}, 16, v{src+1}")
                e(f"v_and_b32 v{B+7}, 0xffff0000, v{src+1}")
                for r in range(4):
                    e(f"v_add_f32 v{a+r}, v{a+r}, v{B+4+r}")

    g.body(4, 8, 32, 33, 4, acc_init=init)
    assert g.vfree + 4 <= EB
    for j in range(9):
        a = g.ACC + 4 * j
        e(f"v_cvt_pk_bf16_f32 v{a}, v{a}, v{a+1}")
        e(f"v_cvt_pk_bf16_f32 v{a+1}, v{a+2}, v{a+3}")
        e(f"buffer_store_dwordx2 v[{a}:{a+1}], v{EB+2}, s[24:27], s34 offen offset:{32*j}")
    k.label(done)
    e("s_endpgm")
    k.maxs = 60
    k.ldsz = g.lds
    return k


def attn_body(k, wbase, bar_mask, done):
    e = k.e
    k.srd(4, "ws", WS_Q, SZ_ACT)
    k.srd(8, "ws", WS_KM, WS_H - WS_KM)
    k.srd(12, "ws", WS_O, SZ_ACT)
    k.srd_finish()
    k.stamp(0, 1)
    e("s_setprio 3")
    Q0, Q1 = 4, 8
    KM = [12, 16]
    K1 = [20, 24]
    VV = [28, 36]
    SS = [44, 60]
    P = 76
    O = 84
    T = 100
    vKo, vKe, vVo, vNM, vML, vQo, vBig = 108, 109, 110, 111, 112, 113, 114
    k.maxv = max(k.maxv, 116)
    sK, sKE, sV, sT, sFl, sCnt, sBM = 20, 21, 22, 23, 24, 25, 26
    e(f"v_bfe_u32 v{T}, v0, 6, 3")
    e("s_nop 0")
    e(f"v_readfirstlane_b32 s16, v{T}")
    e("s_nop 3")
    e("s_lshl_b32 s17, s2, 3")
    e("s_add_u32 s16, s16, s17")
    if wbase:
        e(f"s_add_u32 s16, s16, {wbase}")
    e("s_lshr_b32 s17, s16, 6")
    e("s_and_b32 s18, s16, 63")
    e(f"v_and_b32 v{T}, 31, v0")
    e(f"v_bfe_u32 v{T+1}, v0, 5, 1")
    e(f"v_mov_b32 v{vBig}, 0x80000000")
    e("s_lshl_b32 s19, s18, 5")
    e(f"v_add_u32 v{T+2}, s19, v{T}")
    e("s_movk_i32 s19, 1152")
    e(f"v_mul_lo_u32 v{T+2}, v{T+2}, s19")
    e("s_mul_i32 s19, s17, 36")
    e(f"v_add_u32 v{vQo}, s19, v{T+2}")
    e(f"v_lshl_add_u32 v{T+2}, v{T+1}, 4, v{vQo}")
    e(f"buffer_load_dwordx4 v[{Q0}:{Q0+3}], v{T+2}, s[4:7], 0 offen")
    e(f"v_cmp_eq_u32 vcc, 0, v{T+1}")
    e("s_nop 1")
    e(f"v_cndmask_b32 v{T+3}, v{vBig}, v{vQo}, vcc")
    e(f"buffer_load_dword v{Q1}, v{T+3}, s[4:7], 0 offen offset:32")
    e(f"v_cndmask_b32 v{vML}, 0, -1, vcc")
    e(f"v_mov_b32 v{Q1+1}, 0")
    e(f"v_mov_b32 v{Q1+2}, 0")
    e(f"v_mov_b32 v{Q1+3}, 0")
    e(f"v_mov_b32 v{vNM}, 0")
    e(f"v_lshlrev_b32 v{vKo}, 5, v{T}")
    e(f"v_lshl_add_u32 v{vKo}, v{T+1}, 4, v{vKo}")
    e(f"v_lshlrev_b32 v{vKe}, 2, v{T}")
    e(f"v_add_u32 v{vKe}, {WS_KE - WS_KM}, v{vKe}")
    e(f"v_min_u32 v{vVo}, 18, v{T}")
    e(f"v_lshl_add_u32 v{vVo}, v{T+1}, 5, v{vVo}")
    e(f"v_lshlrev_b32 v{vVo}, 4, v{vVo}")
    e(f"v_add_u32 v{vVo}, {WS_VT - WS_KM}, v{vVo}")
    for b in range(2):
        e(f"v_mov_b32 v{K1[b]+1}, 0x3f80")
        e(f"v_mov_b32 v{K1[b]+2}, 0")
        e(f"v_mov_b32 v{K1[b]+3}, 0")
    for r in range(16):
        e(f"v_mov_b32 v{O+r}, 0")
    e(f"s_mov_b32 s{sT}, 0xff800000")
    e(f"s_mov_b32 s{sFl}, 0xff800000")
    e(f"s_mov_b32 s{sBM}, 0x{bar_mask:08x}")

    def loadK(b):
        e(f"buffer_load_dwordx4 v[{KM[b]}:{KM[b]+3}], v{vKo}, s[8:11], s{sK} offen")
        e(f"buffer_load_dword v{K1[b]}, v{vKe}, s[8:11], s{sKE} offen")
        e(f"s_add_u32 s{sK}, s{sK}, 1024")
        e(f"s_add_u32 s{sKE}, s{sKE}, 128")

    def loadV(b):
        e(f"buffer_load_dwordx4 v[{VV[b]}:{VV[b]+3}], v{vVo}, s[8:11], s{sV} offen")
        e(f"buffer_load_dwordx4 v[{VV[b]+4}:{VV[b]+7}], v{vVo}, s[8:11], s{sV} offen offset:1024")
        e(f"s_add_u32 s{sV}, s{sV}, 2048")

    e(f"s_mov_b32 s{sK}, 0")
    e(f"s_mov_b32 s{sKE}, 0")
    e(f"s_mov_b32 s{sV}, 0")
    loadK(0)
    loadK(1)
    loadV(0)
    e("s_waitcnt vmcnt(4)")
    s0 = SS[0]
    e(f"v_mfma_f32_32x32x16_bf16 v[{s0}:{s0+15}], v[{KM[0]}:{KM[0]+3}], v[{Q0}:{Q0+3}], 0")
    e(f"v_mfma_f32_32x32x16_bf16 v[{s0}:{s0+15}], v[{K1[0]}:{K1[0]+3}], v[{Q1}:{Q1+3}], v[{s0}:{s0+15}]")
    loadK(0)
    loadV(1)
    e(f"s_mov_b32 s{sCnt}, 0")
    e("s_nop 7")
    e("s_nop 7")
    k.stamp(1, 1)
    loop = k.newlabel("loop")
    k.label(loop)
    rares = []
    for u in range(2):
        cur, nxt = u, 1 - u
        s = SS[cur]
        sn = SS[nxt]
        e(f"v_max3_f32 v{T}, v{s}, v{s+1}, v{s+2}")
        e(f"v_max3_f32 v{T+1}, v{s+3}, v{s+4}, v{s+5}")
        e(f"v_max3_f32 v{T+2}, v{s+6}, v{s+7}, v{s+8}")
        e(f"v_max3_f32 v{T+3}, v{s+9}, v{s+10}, v{s+11}")
        e(f"v_max3_f32 v{T+4}, v{s+12}, v{s+13}, v{s+14}")
        e(f"v_max3_f32 v{T}, v{T}, v{T+1}, v{s+15}")
        e(f"v_max3_f32 v{T+2}, v{T+2}, v{T+3}, v{T+4}")
        e(f"v_max_f32 v{T}, v{T}, v{T+2}")
        e(f"v_cmp_lt_f32 vcc, s{sT}, v{T}")
        rl = k.newlabel("rare")
        bk = k.newlabel("back")
        rares.append((rl, bk, s, sn))
        e(f"s_cbranch_vccnz {rl}")
        k.label(bk)
        e("s_waitcnt vmcnt(6)")
        e(f"v_mfma_f32_32x32x16_bf16 v[{sn}:{sn+15}], v[{KM[nxt]}:{KM[nxt]+3}], v[{Q0}:{Q0+3}], 0")
        for r in range(4):
            e(f"v_exp_f32 v{s+r}, v{s+r}")
        e(f"v_mfma_f32_32x32x16_bf16 v[{sn}:{sn+15}], v[{K1[nxt]}:{K1[nxt]+3}], v[{Q1}:{Q1+3}], v[{sn}:{sn+15}]")
        loadK(nxt)
        for r in range(4, 8):
            e(f"v_exp_f32 v{s+r}, v{s+r}")
        for r in range(4):
            e(f"v_cvt_pk_bf16_f32 v{P+r}, v{s+2*r}, v{s+2*r+1}")
        e(f"v_exp_f32 v{s+8}, v{s+8}")
        e(f"v_exp_f32 v{s+9}, v{s+9}")
        e("s_waitcnt vmcnt(6)")
        v = VV[cur]
        e(f"v_mfma_f32_32x32x16_bf16 v[{O}:{O+15}], v[{v}:{v+3}], v[{P}:{P+3}], v[{O}:{O+15}]")
        for r in range(10, 16):
            e(f"v_exp_f32 v{s+r}, v{s+r}")
        for r in range(4, 8):
            e(f"v_cvt_pk_bf16_f32 v{P+r}, v{s+2*r}, v{s+2*r+1}")
        e("s_nop 1")
        e(f"v_mfma_f32_32x32x16_bf16 v[{O}:{O+15}], v[{v+4}:{v+7}], v[{P+4}:{P+7}], v[{O}:{O+15}]")
        loadV(cur)
    if bar_mask:
        nb = k.newlabel("nobar")
        e(f"s_bitcmp1_b32 s{sBM}, s{sCnt}")
        e(f"s_cbranch_scc0 {nb}")
        e("s_barrier")
        k.label(nb)
    e(f"s_add_u32 s{sCnt}, s{sCnt}, 1")
    e(f"s_cmp_lt_u32 s{sCnt}, 32")
    e(f"s_cbranch_scc1 {loop}")
    k.stamp(2, 1)
    e("s_nop 15")
    e("s_nop 3")
    e(f"v_mov_b32 v{T}, v{O+10}")
    e(f"v_mov_b32 v{T+1}, v{O+10}")
    e("s_nop 1")
    e(f"v_permlane32_swap_b32 v{T}, v{T+1}")
    e("s_nop 1")
    e(f"v_rcp_f32 v{T}, v{T}")
    e("s_nop 0")
    for r in range(10):
        e(f"v_mul_f32 v{O+r}, v{O+r}, v{T}")
    for r in range(5):
        e(f"v_cvt_pk_bf16_f32 v{O+r}, v{O+2*r}, v{O+2*r+1}")
    e(f"v_bfe_u32 v{T+1}, v0, 5, 1")
    e(f"v_lshl_add_u32 v{T+2}, v{T+1}, 3, v{vQo}")
    e(f"buffer_store_dwordx2 v[{O}:{O+1}], v{T+2}, s[12:15], 0 offen")
    e(f"buffer_store_dwordx2 v[{O+2}:{O+3}], v{T+2}, s[12:15], 0 offen offset:16")
    e(f"v_cmp_eq_u32 vcc, 0, v{T+1}")
    e("s_nop 1")
    e(f"v_cndmask_b32 v{T+3}, v{vBig}, v{vQo}, vcc")
    e(f"buffer_store_dword v{O+4}, v{T+3}, s[12:15], 0 offen offset:32")
    e(f"s_branch {done}")
    for (rl, bk, s, sn) in rares:
        k.label(rl)
        e(f"v_mov_b32 v{T+1}, v{T}")
        e("s_nop 7")
        e(f"v_permlane32_swap_b32 v{T}, v{T+1}")
        e("s_nop 1")
        e(f"v_max_f32 v{T}, v{T}, v{T+1}")
        e(f"v_max_f32 v{T}, s{sFl}, v{T}")
        e(f"v_sub_f32 v{T+1}, v{vNM}, v{T}")
        e(f"v_cvt_pk_bf16_f32 v{T+1}, v{T+1}, v{T+1}")
        e(f"v_lshlrev_b32 v{T+1}, 16, v{T+1}")
        e(f"v_sub_f32 v{T+2}, v{vNM}, v{T+1}")
        e(f"v_mov_b32 v{vNM}, v{T+1}")
        e(f"v_lshrrev_b32 v{T+3}, 16, v{T+1}")
        e(f"v_and_b32 v{Q1+1}, v{T+3}, v{vML}")
        e(f"v_exp_f32 v{T+3}, -v{T+2}")
        e("s_nop 7")
        e(f"v_min_f32 v{T+3}, 1.0, v{T+3}")
        for r in range(16):
            e(f"v_sub_f32 v{s+r}, v{s+r}, v{T+2}")
        for r in range(11):
            e(f"v_mul_f32 v{O+r}, v{O+r}, v{T+3}")
        e(f"s_mov_b32 s{sT}, 0x41000000")
        e(f"s_mov_b32 s{sFl}, 0")
        e(f"s_branch {bk}")


def split_roles(k, attl):
    e = k.e
    e("v_lshrrev_b32 v1, 9, v0")
    e("s_nop 0")
    e("v_readfirstlane_b32 s3, v1")
    e("s_nop 3")
    e("s_cmp_lg_u32 s3, 0")
    e(f"s_cbranch_scc1 {attl}")


def mask_of(its):
    m = 0
    for i in its:
        m |= 1 << i
    return m


HEADER = open("parallel_sum__grouped_kv_mqa__mixer_channel_mlp__prompt.s.ref").read().split("; Override launch")[0]


def emit(kernels, launches):
    out = [HEADER.rstrip()]
    for (kn, grid, block, lds) in launches:
        out.append(f"; @launch kernel={kn} grid=({grid},1,1) block=({block},1,1) lds={lds}")
    out.append('.amdgcn_target "amdgcn-amd-amdhsa--gfx950"')
    out.append(".text")
    for k in kernels:
        out.append(f".globl {k.name}")
        out.append(".p2align 8")
        out.append(f".type {k.name},@function")
        out.append(f"{k.name}:")
        out.append(k.text())
    out.append('.section .rodata,"a"')
    for k in kernels:
        nv = k.maxv
        acc = -(-nv // 4) * 4
        out.append(".p2align 6")
        out.append(f".amdhsa_kernel {k.name}")
        out.append(f"  .amdhsa_next_free_vgpr {nv}")
        out.append(f"  .amdhsa_next_free_sgpr {100 if getattr(k,'stamped',False) else max(k.maxs, 16)}")
        out.append(f"  .amdhsa_accum_offset {acc}")
        out.append("  .amdhsa_group_segment_fixed_size 0")
        out.append("  .amdhsa_kernarg_size 104")
        out.append("  .amdhsa_user_sgpr_count 2")
        out.append("  .amdhsa_user_sgpr_kernarg_segment_ptr 1")
        out.append("  .amdhsa_system_sgpr_workgroup_id_x 1")
        out.append(".end_amdhsa_kernel")
    return "\n".join(out) + "\n"


def main():
    ln = gen_ln("ln_kernel")
    qkv = gen_qkv("qkv_kernel")
    g1 = gen_gemm1("gemm1_kernel")
    g2 = gen_gemm2("gemm2_kernel")
    fin = gen_final("final_kernel")
    kernels = [ln, qkv, g1, g2, fin]
    launches = [("ln_kernel", 256, 256, 0),
                ("qkv_kernel", 160, 256, qkv.ldsz),
                ("gemm1_kernel", 256, 1024, g1.ldsz),
                ("gemm2_kernel", 256, 512, g2.ldsz),
                ("final_kernel", 128, 256, fin.ldsz)]
    txt = emit(kernels, launches)
    path = sys.argv[1] if len(sys.argv) > 1 else "parallel_sum__grouped_kv_mqa__mixer_channel_mlp__prompt.s"
    open(path, "w").write(txt)
    for k in kernels:
        print(k.name, "vgpr", k.maxv, "lds", getattr(k, "ldsz", 0), "lines", len(k.L))


if __name__ == "__main__":
    main()

    open("gen_consts.py", "w").write(
        "".join(f"{n} = {globals()[n]!r}\n" for n in ["WS_XN", "WS_Y", "WS_Q", "WS_O", "WS_WKV", "WS_KM", "WS_KE", "WS_VT", "WS_H", "WS_P", "QSCALE"]))
```

```python
import math, struct, sys, os

S_TOK = 2048
D = 576
F = 4608
H = 32
DH = 18

SZ_ACT = S_TOK * D * 2
WS_XN = 0
WS_Y = WS_XN + SZ_ACT
WS_Q = WS_Y + SZ_ACT
WS_O = WS_Q + SZ_ACT
WS_WKV = WS_O + SZ_ACT
WS_KM = WS_WKV + 576 * 64 * 2
WS_KE = WS_KM + 2048 * 32
WS_VT = WS_KE + 2048 * 4
WS_H = WS_VT + 128 * 1024 + 8192
WS_P = WS_H + S_TOK * F * 2
WS_AS = WS_P + 4 * S_TOK * D * 4
WS_END = WS_AS + 2048 * 3072
WS_BYTES = 268435456
WS_DBG = 60 << 20

KA = dict(x=0, wq=8, wk=16, wv=24, wo=32, bx=40, w1=48, b1=56, w2=64, b2=72, out=80, dbg=88, ws=96)
SZ = dict(x=SZ_ACT, wq=D * D * 2, wk=D * 18 * 2, wv=D * 18 * 2, wo=D * D * 2, w1=D * F * 2, b1=F * 2,
          w2=F * D * 2, b2=D * 2, out=SZ_ACT, ws=WS_BYTES)


STF = os.environ.get('STF', ' sc1')


def f32bits(x):
    return struct.unpack('<I', struct.pack('<f', x))[0]


def magic(div, maxval):
    for sh in range(8, 31):
        M = -(-(1 << sh) // div)
        if M * maxval >= (1 << 32):
            break
        if all(((c * M) >> sh) == c // div for c in range(maxval)):
            return M, sh
    raise ValueError("no magic")


class Kern:
    def __init__(self, name):
        self.name = name
        self.L = []
        self.maxv = 0
        self.maxs = 0
        self.lbl = 0

    def e(self, s):
        self.L.append("  " + s)

    def c(self, s):
        self.L.append("  ; " + s)

    def label(self, l):
        self.L.append(l + ":")

    def newlabel(self, p="L"):
        self.lbl += 1
        return f"{self.name}_{p}{self.lbl}"

    def srd(self, sbase, arg, off=0, size=None):
        self.e(f"s_load_dwordx2 s[{sbase}:{sbase+1}], s[0:1], {KA[arg]}")
        self._pending = getattr(self, "_pending", [])
        self._pending.append((sbase, arg, off, size))

    def srd_finish(self):
        self.e("s_waitcnt lgkmcnt(0)")
        for sbase, arg, off, size in self._pending:
            if off:
                self.e(f"s_add_u32 s{sbase}, s{sbase}, {off}")
                self.e(f"s_addc_u32 s{sbase+1}, s{sbase+1}, 0")
            sz = (SZ[arg] - off) if size is None else size
            self.e(f"s_mov_b32 s{sbase+2}, {sz}")
            self.e(f"s_mov_b32 s{sbase+3}, 0x00020000")
        self._pending = []

    def stamp(self, idx, role):
        if not os.environ.get("STAMP"):
            return
        e = self.e
        e("s_memtime s[90:91]")
        e("s_load_dwordx2 s[92:93], s[0:1], 88")
        e("s_waitcnt lgkmcnt(0)")
        e("s_mov_b32 s94, 256")
        e("s_mov_b32 s95, 0x20000")
        R0, R1 = (126, 127) if self.name.startswith("gemm") else (250, 251)
        e(f"v_and_b32 v{R1}, 511, v0")
        e(f"v_cmp_eq_u32 vcc, 0, v{R1}")
        e(f"v_mov_b32 v{R1}, {(role*16+idx)*4}")
        e(f"v_mov_b32 v{R0}, 0x80000000")
        e("s_nop 1")
        e(f"v_cndmask_b32 v{R1}, v{R0}, v{R1}, vcc")
        e(f"v_mov_b32 v{R0}, s90")
        l = self.newlabel("st")
        e("s_cmp_lg_u32 s2, 3")
        e(f"s_cbranch_scc1 {l}")
        e(f"buffer_store_dword v{R0}, v{R1}, s[92:95], 0 offen")
        self.label(l)
        self.maxv = max(self.maxv, R1 + 1)
        self.stamped = True

    def wgstamp(self, slot, kidx):
        if not os.environ.get("WGSTAMP"):
            return
        e = self.e
        R0, R1 = (126, 127) if self.name.startswith("gemm") else (250, 251)
        e("s_memrealtime s[90:91]" if (slot < 2 or kidx == 2) and kidx != 1 else "s_memtime s[90:91]")
        e("s_load_dwordx2 s[92:93], s[0:1], 96")
        e("s_waitcnt lgkmcnt(0)")
        e(f"s_add_u32 s92, s92, {WS_DBG + kidx * 65536}")
        e("s_addc_u32 s93, s93, 0")
        e("s_mov_b32 s94, 65536")
        e("s_mov_b32 s95, 0x20000")
        e(f"v_and_b32 v{R1}, 511, v0")
        e(f"v_cmp_eq_u32 vcc, 0, v{R1}")
        e(f"s_lshl_b32 s96, s2, 4")
        e(f"s_add_u32 s96, s96, {slot*4}")
        e(f"v_mov_b32 v{R1}, s96")
        e(f"v_mov_b32 v{R0}, 0x80000000")
        e("s_nop 1")
        e(f"v_cndmask_b32 v{R1}, v{R0}, v{R1}, vcc")
        e(f"v_mov_b32 v{R0}, s90")
        e(f"buffer_store_dword v{R0}, v{R1}, s[92:95], 0 offen")
        self.maxv = max(self.maxv, R1 + 1)
        self.stamped = True

    def text(self):
        return "\n".join(self.L)


def vr(a, n=1):
    return f"v{a}" if n == 1 else f"v[{a}:{a+n-1}]"


def sr(a, n=1):
    return f"s{a}" if n == 1 else f"s[{a}:{a+n-1}]"


def gen_ln(name):
    k = Kern(name)
    e = k.e
    done = k.newlabel("done")
    e("s_cmp_ge_u32 s2, 256")
    e(f"s_cbranch_scc1 {done}")
    k.srd(4, "x")
    k.srd(8, "ws", WS_XN, SZ_ACT)
    k.srd(12, "ws", WS_Y, SZ_ACT)
    k.srd(16, "wk")
    k.srd(20, "wv")
    k.srd(24, "ws", WS_WKV, 576 * 64 * 2)
    k.srd_finish()
    e("v_lshrrev_b32 v1, 5, v0")
    e("s_lshl_b32 s3, s2, 3")
    e("v_add_u32 v1, s3, v1")
    e("s_movk_i32 s28, 1152")
    e("v_mul_lo_u32 v1, v1, s28")
    e("v_and_b32 v2, 31, v0")
    e("v_lshl_add_u32 v1, v2, 2, v1")
    X = 4
    for i in range(9):
        e(f"buffer_load_dword v{X+i}, v1, s[4:7], 0 offen offset:{128*i}")
    skip = k.newlabel("skipw")
    e("s_cmp_ge_u32 s2, 144")
    e(f"s_cbranch_scc1 {skip}")
    e("v_lshrrev_b32 v60, 6, v0")
    e("s_lshl_b32 s3, s2, 2")
    e("v_add_u32 v60, s3, v60")
    e("v_and_b32 v61, 63, v0")
    e("v_mul_u32_u24 v62, 36, v60")
    e("v_lshl_add_u32 v63, v61, 1, v62")
    e("v_mov_b32 v58, 0x80000000")
    e("v_cmp_gt_u32 vcc, 18, v61")
    e("s_nop 1")
    e("v_cndmask_b32 v63, v58, v63, vcc")
    e("v_subrev_u32 v59, 32, v61")
    e("v_lshl_add_u32 v57, v59, 1, v62")
    e("v_cmp_gt_u32 vcc, 18, v59")
    e("s_nop 1")
    e("v_cndmask_b32 v57, v58, v57, vcc")
    e("buffer_load_ushort v56, v63, s[16:19], 0 offen")
    e("buffer_load_ushort v55, v57, s[20:23], 0 offen")
    e("v_lshlrev_b32 v60, 7, v60")
    e("v_lshl_add_u32 v60, v61, 1, v60")
    e("s_waitcnt vmcnt(0)")
    e("v_or_b32 v56, v56, v55")
    e("buffer_store_short v56, v60, s[24:27], 0 offen")
    k.label(skip)
    e("s_waitcnt vmcnt(0)")
    E = 16
    T = 40

    def unpack(src0):
        for i in range(9):
            e(f"v_lshlrev_b32 v{E+2*i}, 16, v{src0+i}")
            e(f"v_and_b32 v{E+2*i+1}, 0xffff0000, v{src0+i}")

    def reduce32(r, t):
        for mod in ("quad_perm:[1,0,3,2]", "quad_perm:[2,3,0,1]", "row_half_mirror", "row_mirror"):
            e("s_nop 1")
            e(f"v_add_f32_dpp v{t}, v{r}, v{r} {mod} row_mask:0xf bank_mask:0xf")
            e(f"v_mov_b32 v{r}, v{t}")
        e(f"ds_swizzle_b32 v{t}, v{r} offset:0x401F")
        e("s_waitcnt lgkmcnt(0)")
        e(f"v_add_f32 v{r}, v{r}, v{t}")

    def bf16r(r):
        e(f"v_cvt_pk_bf16_f32 v{r}, v{r}, v{r}")
        e(f"v_lshlrev_b32 v{r}, 16, v{r}")

    def layernorm(dst):
        e(f"v_add_f32 v{T}, v{E}, v{E+1}")
        for i in range(2, 18):
            e(f"v_add_f32 v{T}, v{T}, v{E+i}")
        reduce32(T, T + 1)
        e(f"v_mul_f32 v{T}, 0x{f32bits(1.0/576):08x}, v{T}")
        e(f"v_sub_f32 v{T+2}, v{E}, v{T}")
        e(f"v_mul_f32 v{T+3}, v{T+2}, v{T+2}")
        for i in range(1, 18):
            e(f"v_sub_f32 v{T+2}, v{E+i}, v{T}")
            e(f"v_fmac_f32 v{T+3}, v{T+2}, v{T+2}")
        reduce32(T + 3, T + 1)
        e(f"v_mul_f32 v{T+3}, 0x{f32bits(1.0/576):08x}, v{T+3}")
        bf16r(T)
        bf16r(T + 3)
        e(f"v_add_f32 v{T+3}, 0x{f32bits(1e-5):08x}, v{T+3}")
        bf16r(T + 3)
        e(f"v_sqrt_f32 v{T+3}, v{T+3}")
        e("s_nop 0")
        bf16r(T + 3)
        e(f"v_rcp_f32 v{T+3}, v{T+3}")
        for i in range(9):
            e(f"v_sub_f32 v{T+4}, v{E+2*i}, v{T}")
            e(f"v_sub_f32 v{T+5}, v{E+2*i+1}, v{T}")
            e(f"v_cvt_pk_bf16_f32 v{T+4}, v{T+4}, v{T+5}")
            e(f"v_and_b32 v{T+5}, 0xffff0000, v{T+4}")
            e(f"v_lshlrev_b32 v{T+4}, 16, v{T+4}")
            e(f"v_mul_f32 v{T+4}, v{T+4}, v{T+3}")
            e(f"v_mul_f32 v{T+5}, v{T+5}, v{T+3}")
            e(f"v_cvt_pk_bf16_f32 v{dst+i}, v{T+4}, v{T+5}")

    unpack(X)
    layernorm(X)
    for i in range(9):
        e(f"buffer_store_dword v{X+i}, v1, s[8:11], 0 offen offset:{128*i}")
    unpack(X)
    Y = 64
    layernorm(Y)
    for i in range(9):
        e(f"buffer_store_dword v{Y+i}, v1, s[12:15], 0 offen offset:{128*i}")
    k.label(done)
    e("s_endpgm")
    k.maxv = 80
    k.maxs = 32
    return k


class Gemm:
    def __init__(self, k, cfg):
        self.k = k
        self.__dict__.update(cfg)
        self.TM = self.wm * self.mt * 16
        self.RS = self.nt * 32
        self.gap = cfg.get("gap", 128)
        self.CGv = 8 * self.RS // 16
        self.CG = self.CGv + self.gap // 16
        self.xbytes = self.TM * 128
        nch = 8 * self.CG
        self.NWV = self.wm * self.wk
        self.nWtot = -(-nch // 64)
        self.nWd = -(-self.nWtot // self.NWV)
        self.wbytes = self.nWtot * 1024
        self.stage_bytes = self.xbytes + self.wbytes
        self.nXd = self.xbytes // 1024 // self.NWV
        assert self.nXd % 2 == 0
        self.lb = cfg.get('lds_base', 0)
        self.lds = self.lb + self.nbuf * self.stage_bytes
        assert self.lds <= 163840

    def body(self, sX, sW, s_xoff, s_woff, vbase, acc_init=None):
        k = self.k
        e = k.e
        mt, nt, wm, wk, NB = self.mt, self.nt, self.wm, self.wk, self.nbuf
        v = vbase
        self.ACC = ACC = v; v += 4 * mt * nt
        nxb = 2 if wk == 1 else 1
        XF = [v + 4 * mt * i for i in range(nxb)]; v += 4 * mt * nxb
        NW = cfg_nw = self.__dict__.get('nw', 4)
        WF = [v + 4 * i for i in range(NW)]; v += 4 * NW
        vXa = [[v + 2 * b, v + 2 * b + 1] for b in range(NB)]; v += 2 * NB
        vWa = [v + b for b in range(NB)]; v += NB
        vXg = [v, v + 1]; v += 2
        vWg = [v + i for i in range(self.nWd)]; v += self.nWd
        vt = [v, v + 1, v + 2, v + 3]; v += 4
        self.vfree = v - 4
        self.vt = vt
        k.maxv = max(k.maxv, v)
        SW, SWM, SWK, SXB, SLX, SLW, ST = 40, 41, 42, 43, 44, 45, 46
        self.s_wave, self.s_wm, self.s_wk = SW, SWM, SWK
        k.stamp(0, 0)
        e(f"v_lshrrev_b32 v{vt[0]}, 6, v0")
        e("s_nop 0")
        e(f"v_readfirstlane_b32 s{SW}, v{vt[0]}")
        e(f"v_and_b32 v{vt[1]}, 63, v0")
        lane = vt[1]
        e("s_nop 2")
        if wk == 1:
            e(f"s_mov_b32 s{SWM}, s{SW}")
            e(f"s_mov_b32 s{SWK}, 0")
        else:
            assert wk == 2 and wm in (2, 4)
            e(f"s_and_b32 s{SWM}, s{SW}, {wm - 1}")
            e(f"s_lshr_b32 s{SWK}, s{SW}, {1 if wm == 2 else 2}")
        XB = self.__dict__.get("xblk", 0)
        e(f"v_lshrrev_b32 v{vt[0]}, 3, v{lane}")
        if XB:
            e(f"v_lshlrev_b32 v{vt[0]}, 4, v{vt[0]}")
        else:
            e(f"s_mov_b32 s{ST}, {self.XS}")
            e(f"v_mul_lo_u32 v{vt[0]}, v{vt[0]}, s{ST}")
        e(f"v_lshrrev_b32 v{vt[2]}, 4, v{lane}")
        e(f"v_and_b32 v{vt[3]}, 7, v{lane}")
        e(f"v_xor_b32 v{vt[2]}, v{vt[2]}, v{vt[3]}")
        e(f"v_lshl_add_u32 v{vXg[0]}, v{vt[2]}, {8 if XB else 4}, v{vt[0]}")
        e(f"v_xor_b32 v{vt[2]}, 4, v{vt[2]}")
        e(f"v_lshl_add_u32 v{vXg[1]}, v{vt[2]}, {8 if XB else 4}, v{vt[0]}")
        if XB:
            e(f"v_lshlrev_b32 v{vXg[0]}, 4, v{lane}")
            e(f"v_add_u32 v{vXg[1]}, 1024, v{vXg[0]}")
        rows_pw = self.nXd * 8
        e(f"s_mul_i32 s{SXB}, s{SW}, {(rows_pw // 16 * XB) if XB else (rows_pw * self.XS)}")
        e(f"s_add_u32 s{SXB}, s{SXB}, s{s_xoff}")
        e(f"s_mul_i32 s{SLX}, s{SW}, {self.nXd * 1024}")
        e(f"s_lshl_b32 s{SLW}, s{SW}, 10")
        e(f"s_add_u32 s{SLW}, s{SLW}, {self.xbytes}")
        nch_max = self.nWd * self.NWV * 64
        M1, sh1 = magic(self.CG, nch_max)
        M2, sh2 = magic(self.RS // 16, self.CG)
        for i in range(self.nWd):
            e(f"s_lshl_b32 s{ST}, s{SW}, 6")
            e(f"s_add_u32 s{ST}, s{ST}, {i * 64 * self.NWV}")
            e(f"v_add_u32 v{vt[0]}, s{ST}, v{lane}")
            e(f"s_mov_b32 s{ST}, {M1}")
            e(f"v_mul_lo_u32 v{vt[2]}, v{vt[0]}, s{ST}")
            e(f"v_lshrrev_b32 v{vt[2]}, {sh1}, v{vt[2]}")
            e(f"v_mul_u32_u24 v{vt[3]}, {self.CG}, v{vt[2]}")
            e(f"v_sub_u32 v{vt[0]}, v{vt[0]}, v{vt[3]}")
            e(f"v_mul_u32_u24 v{vt[3]}, {M2}, v{vt[0]}")
            e(f"v_lshrrev_b32 v{vt[3]}, {sh2}, v{vt[3]}")
            g = vWg[i]
            e(f"v_mul_u32_u24 v{g}, {self.RS // 16}, v{vt[3]}")
            e(f"v_sub_u32 v{g}, v{vt[0]}, v{g}")
            e(f"v_lshlrev_b32 v{g}, 4, v{g}")
            e(f"v_lshl_add_u32 v{vt[3]}, v{vt[2]}, 3, v{vt[3]}")
            e(f"s_mov_b32 s{ST}, {self.WSb}")
            e(f"v_mul_lo_u32 v{vt[3]}, v{vt[3]}, s{ST}")
            e(f"v_add_u32 v{g}, v{g}, v{vt[3]}")
            e(f"v_cmp_gt_u32 vcc, {self.CGv}, v{vt[0]}")
            e(f"v_cmp_gt_u32 s[48:49], 8, v{vt[2]}")
            e("s_nop 1")
            e("s_and_b64 vcc, vcc, s[48:49]")
            e(f"v_mov_b32 v{vt[3]}, 0x80000000")
            e("s_nop 1")
            e(f"v_cndmask_b32 v{g}, v{vt[3]}, v{g}, vcc")

        def dma_list(st):
            buf = self.lb + (st % NB) * self.stage_bytes
            out = []
            for i in range(self.nXd):
                out.append([f"s_add_u32 m0, s{SLX}, {buf + i * 1024}",
                            f"s_add_u32 s{ST}, s{SXB}, {((i // 2) * XB + st * 2048) if XB else (i * 8 * self.XS + st * 128)}",
                            f"buffer_load_dwordx4 v{vXg[i & 1]}, s[{sX}:{sX+3}], s{ST} offen lds"])
            for i in range(self.nWd):
                g = [f"s_add_u32 m0, s{SLW}, {buf + i * self.NWV * 1024}",
                     f"s_add_u32 s{ST}, s{s_woff}, {st * 64 * self.WSb}",
                     f"buffer_load_dwordx4 v{vWg[i]}, s[{sW}:{sW+3}], s{ST} offen lds"]
                nval = self.nWtot - i * self.NWV
                if nval < self.NWV:
                    lb = k.newlabel("wsk")
                    g = [f"s_cmp_ge_u32 s{SW}, {nval}", f"s_cbranch_scc1 {lb}"] + g + [f"{lb}:"]
                out.append(g)
            return out

        nD = self.nXd + self.nWtot // self.NWV
        self.pro_dma = min(NB - 1, self.nst) * nD
        if getattr(self, "pre_init", None):
            self.pre_init(self)
        for st in range(min(NB - 1, self.nst)):
            for g in dma_list(st):
                for l in g:
                    e(l)
        e(f"v_and_b32 v{vt[0]}, 15, v{lane}")
        e(f"v_lshrrev_b32 v{vt[2]}, 4, v{lane}")
        e(f"v_lshrrev_b32 v{vt[3]}, 1, v{vt[0]}")
        e(f"v_xor_b32 v{vt[3]}, v{vt[3]}, v{vt[2]}")
        if XB:
            e(f"v_lshlrev_b32 v{vt[0]}, 4, v{vt[0]}")
            e(f"v_lshl_add_u32 v{vXa[0][0]}, v{vt[2]}, 8, v{vt[0]}")
        else:
            e(f"v_lshlrev_b32 v{vt[0]}, 7, v{vt[0]}")
            e(f"v_lshl_add_u32 v{vXa[0][0]}, v{vt[3]}, 4, v{vt[0]}")
        e(f"s_mul_i32 s{ST}, s{SWM}, {mt * 16 * 128}")
        e(f"v_add_u32 v{vXa[0][0]}, s{ST}, v{vXa[0][0]}")
        if wk == 2:
            e(f"s_lshl_b32 s{ST}, s{SWK}, {10 if XB else 6}")
            e(f"v_xor_b32 v{vXa[0][0]}, s{ST}, v{vXa[0][0]}")
        e(f"v_xor_b32 v{vXa[0][1]}, {1024 if XB else 64}, v{vXa[0][0]}")
        e(f"v_bfe_u32 v{vt[0]}, v{lane}, 2, 2")
        e(f"v_lshl_add_u32 v{vt[0]}, v{vt[2]}, 3, v{vt[0]}")
        e(f"v_mul_u32_u24 v{vt[0]}, {self.RS}, v{vt[0]}")
        e(f"v_mul_u32_u24 v{vt[3]}, {self.gap}, v{vt[2]}")
        e(f"v_add_u32 v{vt[0]}, v{vt[0]}, v{vt[3]}")
        e(f"v_and_b32 v{vt[3]}, 3, v{lane}")
        e(f"v_lshl_add_u32 v{vWa[0]}, v{vt[3]}, 3, v{vt[0]}")
        KSW = 32 * self.RS + 4 * self.gap
        if wk == 2:
            e(f"s_mul_i32 s{ST}, s{SWK}, {KSW}")
            e(f"s_add_u32 s{ST}, s{ST}, {self.xbytes}")
        else:
            e(f"s_mov_b32 s{ST}, {self.xbytes}")
        e(f"v_add_u32 v{vWa[0]}, s{ST}, v{vWa[0]}")
        if self.lb:
            e(f"v_add_u32 v{vXa[0][0]}, {self.lb}, v{vXa[0][0]}")
            e(f"v_add_u32 v{vXa[0][1]}, {self.lb}, v{vXa[0][1]}")
            e(f"v_add_u32 v{vWa[0]}, {self.lb}, v{vWa[0]}")
        for b in range(1, NB):
            e(f"v_add_u32 v{vXa[b][0]}, {b * self.stage_bytes}, v{vXa[0][0]}")
            e(f"v_add_u32 v{vXa[b][1]}, {b * self.stage_bytes}, v{vXa[0][1]}")
            e(f"v_add_u32 v{vWa[b]}, {b * self.stage_bytes}, v{vWa[0]}")
        if acc_init is None:
            for r in range(4 * mt * nt):
                e(f"v_mov_b32 v{ACC + r}, 0")
        else:
            acc_init(self)
        extra_vm = getattr(self, "extra_vm", 0)
        fifo = []

        def issue(idn, line):
            e(line)
            fifo.append(idn)

        def need(ids):
            pos = max((fifo.index(i) for i in ids if i in fifo), default=-1)
            if pos >= 0:
                n = len(fifo) - 1 - pos
                e(f"s_waitcnt lgkmcnt({min(n, 15)})")
                del fifo[:pos + 1]

        PF = NW - 1
        nks = 2 if wk == 1 else 1
        nsteps = nks * nt
        for st in range(self.nst):
            aX = vXa[st % NB]
            aW = vWa[st % NB]
            inflight = min(NB - 2, self.nst - 1 - st)
            e(f"s_waitcnt vmcnt({min(63, inflight * nD)})")
            e("s_barrier")
            if st < 13:
                k.stamp(1 + st, 0)
            dmas = dma_list(st + NB - 1) if st + NB - 1 < self.nst else []
            if os.environ.get("G_NODMA"):
                dmas = []

            def rdX(ks):
                for i in range(mt):
                    issue(("X", ks, i), f"ds_read_b128 v[{XF[ks]+4*i}:{XF[ks]+4*i+3}], v{aX[ks]} offset:{2048*i}")

            def rdW(t):
                ks, j = divmod(t, nt)
                w = WF[t % NW]
                o = ks * KSW + 32 * j
                issue(("W", t, 0), f"ds_read_b64_tr_b16 v[{w}:{w+1}], v{aW} offset:{o}")
                issue(("W", t, 1), f"ds_read_b64_tr_b16 v[{w+2}:{w+3}], v{aW} offset:{o + 4*self.RS}")

            rdW(0)
            rdX(0)
            for t in range(1, min(PF, nsteps)):
                rdW(t)
            per = -(-len(dmas) // nsteps)
            for t in range(nsteps):
                ks, j = divmod(t, nt)
                if t + PF < nsteps:
                    rdW(t + PF)
                if nks == 2 and t == min(2, nt - 1):
                    rdX(1)
                for _ in range(per):
                    if dmas:
                        for l in dmas.pop(0):
                            e(l)
                ids = [("W", t, 0), ("W", t, 1)]
                if j == 0:
                    ids += [("X", ks, i) for i in range(mt)]
                need(ids)
                w = WF[t % NW]
                for i in range(mt if not os.environ.get("G_NOMFMA") else 0):
                    a = ACC + 4 * (i * nt + j)
                    e(f"v_mfma_f32_16x16x32_bf16 v[{a}:{a+3}], v[{w}:{w+3}], v[{XF[ks]+4*i}:{XF[ks]+4*i+3}], v[{a}:{a+3}]")
            assert not dmas
            assert not fifo
        e("s_nop 7")
        e("s_nop 7")
        k.stamp(14, 0)


GELU_C0 = -2.0 * math.log2(math.e) * math.sqrt(2.0 / math.pi)
GELU_C1 = GELU_C0 * 0.044715
QSCALE = math.log2(math.e) / math.sqrt(18.0)


def lane_consts(k, g, v_tok, v_g):
    k.e(f"v_and_b32 v{v_tok}, 15, v0")
    k.e(f"v_bfe_u32 v{v_g}, v0, 4, 2")


def qkv_body(k, lds_base, done):
    e = k.e
    kvl = k.newlabel("kv")
    e("v_subrev_u32 v0, 512, v0")
    e("s_cmp_ge_u32 s2, 160")
    e(f"s_cbranch_scc1 {done}")
    k.srd(4, "ws", WS_XN, SZ_ACT)
    k.srd(8, "wq")
    k.srd(12, "ws", WS_Q, SZ_ACT)
    k.srd(16, "ws", WS_WKV, 576 * 64 * 2)
    k.srd(20, "ws", WS_KM, WS_H - WS_KM)
    k.srd_finish()
    e("s_cmp_ge_u32 s2, 128")
    e(f"s_cbranch_scc1 {kvl}")
    g = Gemm(k, dict(mt=1, nt=9, wm=4, wk=1, nst=9, XS=1152, WSb=1152, nbuf=2, nw=8, lds_base=lds_base))
    e("s_lshr_b32 s30, s2, 2")
    e("s_and_b32 s31, s2, 3")
    e(f"s_mul_i32 s32, s30, {64 * 1152}")
    e(f"s_mul_i32 s33, s31, {144 * 2}")
    g.body(4, 8, 32, 33, 4)
    vt = g.vfree
    lane_consts(k, g, vt, vt + 1)
    e(f"s_lshl_b32 s34, s{g.s_wm}, 4")
    e(f"v_add_u32 v{vt}, s34, v{vt}")
    e(f"s_movk_i32 s34, 1152")
    e(f"v_mul_lo_u32 v{vt}, v{vt}, s34")
    e(f"v_lshl_add_u32 v{vt}, v{vt+1}, 3, v{vt}")
    e(f"s_add_u32 s34, s32, s33")
    e(f"s_mov_b32 s35, 0x{f32bits(QSCALE):08x}")
    for j in range(9):
        a = g.ACC + 4 * j
        for r in range(4):
            e(f"v_mul_f32 v{a+r}, s35, v{a+r}")
        e(f"v_cvt_pk_bf16_f32 v{a}, v{a}, v{a+1}")
        e(f"v_cvt_pk_bf16_f32 v{a+1}, v{a+2}, v{a+3}")
        e(f"buffer_store_dwordx2 v[{a}:{a+1}], v{vt}, s[12:15], s34 offen offset:{32*j}")
    e(f"s_branch {done}")
    k.label(kvl)
    g2 = Gemm(k, dict(mt=1, nt=4, wm=4, wk=1, nst=9, XS=1152, WSb=128, gap=32, nbuf=2, lds_base=lds_base))
    e("s_sub_u32 s30, s2, 128")
    e(f"s_mul_i32 s32, s30, {64 * 1152}")
    e("s_mov_b32 s33, 0")
    g2.body(4, 16, 32, 33, 4)
    vt = g2.vfree
    A = g2.ACC
    lane_consts(k, g2, vt, vt + 1)
    e(f"s_lshl_b32 s34, s{g2.s_wm}, 4")
    e(f"s_lshl_b32 s35, s30, 6")
    e(f"s_add_u32 s34, s34, s35")
    e(f"v_add_u32 v{vt}, s34, v{vt}")
    tk, gg, t2, t3 = vt, vt + 1, vt + 2, vt + 3
    big = A + 16
    e(f"v_mov_b32 v{big}, 0x80000000")
    e(f"v_lshlrev_b32 v{t2}, 5, v{tk}")
    e(f"v_lshl_add_u32 v{t2}, v{gg}, 3, v{t2}")
    e(f"v_cvt_pk_bf16_f32 v{A}, v{A}, v{A+1}")
    e(f"v_cvt_pk_bf16_f32 v{A+1}, v{A+2}, v{A+3}")
    e(f"buffer_store_dwordx2 v[{A}:{A+1}], v{t2}, s[20:23], 0 offen")
    e(f"v_cmp_eq_u32 vcc, 0, v{gg}")
    e(f"v_lshlrev_b32 v{t2}, 2, v{tk}")
    e(f"v_add_u32 v{t2}, {WS_KE - WS_KM}, v{t2}")
    e(f"v_cndmask_b32 v{t2}, v{big}, v{t2}, vcc")
    e(f"v_cvt_pk_bf16_f32 v{A+4}, v{A+4}, v{A+5}")
    e(f"buffer_store_dword v{A+4}, v{t2}, s[20:23], 0 offen")
    e(f"v_lshrrev_b32 v{t2}, 4, v{tk}")
    e(f"v_lshlrev_b32 v{t2}, 10, v{t2}")
    e(f"v_bfe_u32 v{t3}, v{tk}, 2, 1")
    e(f"v_lshl_add_u32 v{t2}, v{t3}, 9, v{t2}")
    e(f"v_and_b32 v{t3}, 3, v{tk}")
    e(f"v_lshl_add_u32 v{t2}, v{t3}, 1, v{t2}")
    e(f"v_bfe_u32 v{t3}, v{tk}, 3, 1")
    e(f"v_lshl_add_u32 v{t2}, v{t3}, 3, v{t2}")
    e(f"v_add_u32 v{t2}, {WS_VT - WS_KM}, v{t2}")
    e(f"v_lshl_add_u32 v{t3}, v{gg}, 6, v{t2}")
    e(f"v_cvt_pk_bf16_f32 v{A+8}, v{A+8}, v{A+9}")
    e(f"v_cvt_pk_bf16_f32 v{A+9}, v{A+10}, v{A+11}")
    e(f"buffer_store_short v{A+8}, v{t3}, s[20:23], 0 offen")
    e(f"buffer_store_short_d16_hi v{A+8}, v{t3}, s[20:23], 0 offen offset:16")
    e(f"buffer_store_short v{A+9}, v{t3}, s[20:23], 0 offen offset:32")
    e(f"buffer_store_short_d16_hi v{A+9}, v{t3}, s[20:23], 0 offen offset:48")
    e(f"v_cndmask_b32 v{t3}, v{big}, v{t2}, vcc")
    e(f"v_cvt_pk_bf16_f32 v{A+12}, v{A+12}, v{A+13}")
    e(f"v_mov_b32 v{A+13}, 0x3f80")
    e(f"buffer_store_short v{A+12}, v{t3}, s[20:23], 0 offen offset:256")
    e(f"buffer_store_short_d16_hi v{A+12}, v{t3}, s[20:23], 0 offen offset:272")
    e(f"buffer_store_short v{A+13}, v{t3}, s[20:23], 0 offen offset:288")
    return max(g.lds, g2.lds)


def gen_gemm1(name):
    k = Kern(name)
    e = k.e
    done = k.newlabel("done")
    e("s_cmp_ge_u32 s2, 256")
    e(f"s_cbranch_scc1 {done}")
    attl = k.newlabel("att")
    k.wgstamp(0, 2)
    split_roles(k, attl)
    k.srd(4, "ws", WS_Y, SZ_ACT)
    k.srd(8, "w1")
    k.srd(12, "ws", WS_H, S_TOK * F * 2)
    k.srd(16, "b1")
    k.srd_finish()
    g = Gemm(k, dict(mt=2, nt=9, wm=8, wk=1, nst=9, XS=1152, WSb=9216, nbuf=2))
    e("s_and_b32 s34, s2, 1")
    e("s_lshl_b32 s34, s34, 2")
    e("s_bfe_u32 s35, s2, 0x20003")
    e("s_add_u32 s30, s34, s35")
    e("s_bfe_u32 s34, s2, 0x20001")
    e("s_lshl_b32 s34, s34, 3")
    e("s_lshr_b32 s35, s2, 5")
    e("s_add_u32 s31, s34, s35")
    e(f"s_mul_i32 s32, s30, {256 * 1152}")
    e(f"s_mul_i32 s33, s31, {144 * 2}")

    def pre(g):
        t = g.vt
        e(f"v_bfe_u32 v{t[0]}, v0, 4, 2")
        e(f"v_lshlrev_b32 v{t[0]}, 3, v{t[0]}")
        A = g.ACC
        for j in range(9):
            e(f"buffer_load_dwordx2 v[{A+4*j}:{A+4*j+1}], v{t[0]}, s[16:19], s33 offen offset:{32*j}")
    g.pre_init = pre

    def init(g):
        A = g.ACC
        e(f"s_waitcnt vmcnt({g.pro_dma})")
        for j in range(9):
            a = A + 4 * j
            e(f"v_and_b32 v{a+3}, 0xffff0000, v{a+1}")
            e(f"v_lshlrev_b32 v{a+2}, 16, v{a+1}")
            e(f"v_and_b32 v{a+1}, 0xffff0000, v{a}")
            e(f"v_lshlrev_b32 v{a}, 16, v{a}")
        for i in range(1, 2):
            for r in range(36):
                e(f"v_mov_b32 v{A + 36*i + r}, v{A + r}")

    g.body(4, 8, 32, 33, 4, acc_init=init)
    vt = g.vfree
    HB = 576 * 256
    lane_consts(k, g, vt, vt + 1)
    e(f"v_lshlrev_b32 v{vt}, 4, v{vt}")
    e(f"v_and_b32 v{vt+2}, 1, v{vt+1}")
    e(f"v_lshrrev_b32 v{vt+3}, 1, v{vt+1}")
    W0 = g.ACC + 72
    e(f"v_lshl_add_u32 v{W0}, v{vt+3}, 8, v{vt}")
    e(f"v_lshl_add_u32 v{W0}, v{vt+2}, 3, v{W0}")
    e(f"v_lshl_add_u32 v{vt}, v{vt+2}, 9, v{vt}")
    e(f"v_lshl_add_u32 v{vt}, v{vt+3}, 8, v{vt}")
    e(f"s_lshl_b32 s34, s30, 4")
    e(f"s_lshl_b32 s35, s{g.s_wm}, 1")
    e(f"s_add_u32 s34, s34, s35")
    e(f"s_mul_i32 s34, s34, {HB}")
    e(f"s_mul_i32 s35, s31, {18 * 256}")
    e(f"s_add_u32 s34, s34, s35")
    e(f"s_mov_b32 s36, 0x{f32bits(GELU_C0):08x}")
    e(f"s_mov_b32 s37, 0x{f32bits(GELU_C1):08x}")
    e(f"v_mov_b32 v{vt+1}, s36")
    TT = W0 + 2

    def gelu4(a):
        for r in range(4):
            e(f"v_mul_f32 v{TT+r}, v{a+r}, v{a+r}")
        for r in range(4):
            e(f"v_fma_f32 v{TT+r}, v{TT+r}, s37, v{vt+1}")
        for r in range(4):
            e(f"v_mul_f32 v{TT+r}, v{TT+r}, v{a+r}")
        for r in range(4):
            e(f"v_exp_f32 v{TT+r}, v{TT+r}")
        for r in range(4):
            e(f"v_add_f32 v{TT+r}, 1.0, v{TT+r}")
        for r in range(4):
            e(f"v_rcp_f32 v{TT+r}, v{TT+r}")
        for r in range(4):
            e(f"v_mul_f32 v{a+r}, v{a+r}, v{TT+r}")

    for i in range(2 if not os.environ.get("G_NOEPI") else 0):
        for j in range(0, 9, 2):
            a = g.ACC + 4 * (i * 9 + j)
            e(f"s_add_u32 s35, s34, {i * HB + j * 512}")
            gelu4(a)
            e(f"v_cvt_pk_bf16_f32 v{a}, v{a}, v{a+1}")
            e(f"v_cvt_pk_bf16_f32 v{a+1}, v{a+2}, v{a+3}")
            if j < 8:
                gelu4(a + 4)
                e(f"v_cvt_pk_bf16_f32 v{a+2}, v{a+4}, v{a+5}")
                e(f"v_cvt_pk_bf16_f32 v{a+3}, v{a+6}, v{a+7}")
                e("s_nop 1")
                e(f"v_permlane16_swap_b32 v{a}, v{a+2}")
                e(f"v_permlane16_swap_b32 v{a+1}, v{a+3}")
                e(f"buffer_store_dwordx4 v[{a}:{a+3}], v{vt}, s[12:15], s35 offen{STF}")
            else:
                e(f"buffer_store_dwordx2 v[{a}:{a+1}], v{W0}, s[12:15], s35 offen{STF}")
    k.stamp(15, 0)
    k.wgstamp(1, 2)
    e("s_endpgm")
    k.label(attl)
    qlds = qkv_body(k, g.lds, done)
    k.label(done)
    e("s_endpgm")
    k.maxs = 60
    k.ldsz = qlds
    return k


def gen_gemm2(name):
    k = Kern(name)
    e = k.e
    done = k.newlabel("done")
    e("s_cmp_ge_u32 s2, 256")
    e(f"s_cbranch_scc1 {done}")
    attl = k.newlabel("att")
    k.wgstamp(0, 3)
    k.wgstamp(2, 3)
    split_roles(k, attl)
    k.srd(4, "ws", WS_H, S_TOK * F * 2)
    k.srd(8, "w2")
    k.srd(12, "ws", WS_P, 4 * S_TOK * D * 4)
    k.srd_finish()
    g = Gemm(k, dict(mt=2, nt=9, wm=4, wk=2, nst=18, XS=9216, WSb=1152, nbuf=4, xblk=576 * 256))
    e("s_and_b32 s34, s2, 1")
    e("s_lshl_b32 s34, s34, 3")
    e("s_bfe_u32 s35, s2, 0x30003")
    e("s_add_u32 s30, s34, s35")
    e("s_lshr_b32 s36, s2, 6")
    e("s_bfe_u32 s37, s2, 0x20001")
    e(f"s_mul_i32 s32, s30, {8 * 576 * 256}")
    e(f"s_mul_i32 s34, s37, {144 * 256}")
    e("s_add_u32 s32, s32, s34")
    e(f"s_mul_i32 s33, s37, {1152 * 1152}")
    e(f"s_mul_i32 s34, s36, {144 * 2}")
    e("s_add_u32 s33, s33, s34")
    g.body(4, 8, 32, 33, 4)
    vt = g.vfree
    A = g.ACC
    e("s_barrier")
    e(f"v_and_b32 v{vt}, 63, v0")
    e(f"v_lshlrev_b32 v{vt}, 4, v{vt}")
    e(f"s_mul_i32 s34, s{g.s_wave}, {9 * 1024}")
    e(f"v_add_u32 v{vt+1}, s34, v{vt}")
    e(f"s_xor_b32 s35, s{g.s_wave}, 4")
    e(f"s_mul_i32 s34, s35, {9 * 1024}")
    e(f"v_add_u32 v{vt+2}, s34, v{vt}")
    l1 = k.newlabel("wk1")
    l2 = k.newlabel("join")
    e(f"s_cmp_eq_u32 s{g.s_wk}, 1")
    e(f"s_cbranch_scc1 {l1}")
    for q in range(9):
        e(f"ds_write_b128 v{vt+1}, v[{A+36+4*q}:{A+36+4*q+3}] offset:{1024*q}")
    e(f"s_branch {l2}")
    k.label(l1)
    for q in range(9):
        e(f"ds_write_b128 v{vt+1}, v[{A+4*q}:{A+4*q+3}] offset:{1024*q}")
    e("s_nop 1")
    for r in range(36):
        e(f"v_mov_b32 v{A+r}, v{A+36+r}")
    k.label(l2)
    e("s_waitcnt lgkmcnt(0)")
    e("s_barrier")
    for q in range(9):
        e(f"ds_read_b128 v[{A+36+4*q}:{A+36+4*q+3}], v{vt+2} offset:{1024*q}")
    e(f"s_lshl_b32 s34, s37, 7")
    e(f"s_lshl_b32 s35, s30, 3")
    e(f"s_add_u32 s34, s34, s35")
    e(f"s_lshl_b32 s35, s{g.s_wm}, 1")
    e(f"s_add_u32 s34, s34, s35")
    e(f"s_add_u32 s34, s34, s{g.s_wk}")
    e(f"s_mul_i32 s34, s34, 36")
    e(f"s_mul_i32 s35, s36, 9")
    e(f"s_add_u32 s34, s34, s35")
    e(f"s_lshl_b32 s34, s34, 10")
    for q in range(9):
        e(f"s_waitcnt lgkmcnt({8 - q})")
        a = A + 4 * q
        for r in range(4):
            e(f"v_add_f32 v{a+r}, v{a+r}, v{a+36+r}")
        e(f"s_add_u32 s35, s34, {1024 * q}")
        e(f"buffer_store_dwordx4 v[{a}:{a+3}], v{vt}, s[12:15], s35 offen{STF}")
    k.stamp(15, 0)
    k.wgstamp(1, 3)
    k.wgstamp(3, 3)
    e("s_endpgm")
    k.label(attl)
    attn_body(k, 2, mask_of(eval(os.environ.get('BARS2', 'list(range(0, 18)) + [20, 21]'))), done)
    k.label(done)
    e("s_endpgm")
    k.maxs = 60
    k.ldsz = g.lds
    return k


def gen_final(name):
    k = Kern(name)
    e = k.e
    done = k.newlabel("done")
    e("s_cmp_ge_u32 s2, 128")
    e(f"s_cbranch_scc1 {done}")
    k.wgstamp(0, 4)
    k.wgstamp(2, 4)
    k.srd(4, "ws", WS_O, SZ_ACT)
    k.srd(8, "wo")
    k.srd(12, "ws", WS_P, 4 * S_TOK * D * 4)
    k.srd(16, "x")
    k.srd(20, "b2")
    k.srd(24, "out")
    k.srd_finish()
    g = Gemm(k, dict(mt=1, nt=9, wm=4, wk=1, nst=9, XS=1152, WSb=1152, nbuf=5, nw=8))
    e("s_lshr_b32 s30, s2, 2")
    e("s_and_b32 s31, s2, 3")
    e(f"s_mul_i32 s32, s30, {64 * 1152}")
    e(f"s_mul_i32 s33, s31, {144 * 2}")
    EB = 108
    LB = 112
    k.maxv = max(k.maxv, LB + 9 * 16)

    def pre(g):
        lane_consts(k, g, EB, EB + 1)
        e(f"v_bfe_u32 v{EB+2}, v0, 6, 2")
        e(f"v_lshl_add_u32 v{EB}, v{EB+2}, 4, v{EB}")
        e(f"s_movk_i32 s34, 1152")
        e(f"v_mul_lo_u32 v{EB+2}, v{EB}, s34")
        e(f"v_lshl_add_u32 v{EB+2}, v{EB+1}, 3, v{EB+2}")
        e(f"v_and_b32 v{EB+3}, 63, v0")
        e(f"v_lshlrev_b32 v{EB+3}, 4, v{EB+3}")
        e(f"v_lshlrev_b32 v{EB+1}, 3, v{EB+1}")
        e(f"s_add_u32 s34, s32, s33")
        e(f"v_bfe_u32 v{LB}, v0, 6, 2")
        e("s_nop 0")
        e(f"v_readfirstlane_b32 s35, v{LB}")
        e("s_nop 3")
        e(f"s_lshl_b32 s36, s30, 2")
        e(f"s_add_u32 s35, s35, s36")
        e(f"s_mul_i32 s35, s35, 36")
        e(f"s_mul_i32 s36, s31, 9")
        e(f"s_add_u32 s35, s35, s36")
        e(f"s_lshl_b32 s35, s35, 10")
        for j in range(9):
            B = LB + 16 * j
            e(f"buffer_load_dwordx2 v[{B}:{B+1}], v{EB+2}, s[16:19], s34 offen offset:{32*j}")
            e(f"buffer_load_dwordx2 v[{B+2}:{B+3}], v{EB+1}, s[20:23], s33 offen offset:{32*j}")
            for s_ in range(4):
                e(f"s_add_u32 s36, s35, {s_ * S_TOK * D * 4 + 1024 * j}")
                dst = g.ACC + 4 * j if s_ == 0 else B + 4 * s_
                e(f"buffer_load_dwordx4 v[{dst}:{dst+3}], v{EB+3}, s[12:15], s36 offen")
    g.pre_init = pre

    def init(g):
        e(f"s_waitcnt vmcnt({g.pro_dma})")
        for j in range(9):
            B = LB + 16 * j
            a = g.ACC + 4 * j
            for s_ in (1, 2, 3):
                for r in range(4):
                    e(f"v_add_f32 v{a+r}, v{a+r}, v{B+4*s_+r}")
            for src in (B, B + 2):
                e(f"v_lshlrev_b32 v{B+4}, 16, v{src}")
                e(f"v_and_b32 v{B+5}, 0xffff0000, v{src}")
                e(f"v_lshlrev_b32 v{B+6}, 16, v{src+1}")
                e(f"v_and_b32 v{B+7}, 0xffff0000, v{src+1}")
                for r in range(4):
                    e(f"v_add_f32 v{a+r}, v{a+r}, v{B+4+r}")

    g.body(4, 8, 32, 33, 4, acc_init=init)
    assert g.vfree + 4 <= EB
    for j in range(9):
        a = g.ACC + 4 * j
        e(f"v_cvt_pk_bf16_f32 v{a}, v{a}, v{a+1}")
        e(f"v_cvt_pk_bf16_f32 v{a+1}, v{a+2}, v{a+3}")
        e(f"buffer_store_dwordx2 v[{a}:{a+1}], v{EB+2}, s[24:27], s34 offen offset:{32*j}")
    k.wgstamp(1, 4)
    k.wgstamp(3, 4)
    k.label(done)
    e("s_endpgm")
    k.maxs = 60
    k.ldsz = g.lds
    return k


def attn_body(k, part, bar_mask, done):
    wbase = 0
    e = k.e
    k.srd(4, "ws", WS_Q, SZ_ACT)
    k.srd(8, "ws", WS_KM, WS_H - WS_KM)
    k.srd(12, "ws", WS_O, SZ_ACT)
    k.srd(28, "ws", WS_AS, 2048 * 3072)
    k.srd_finish()
    k.stamp(0, 1)
    e(f"s_setprio {os.environ.get('ATT_PRIO', '3')}")
    Q0, Q1 = 4, 8
    KM = [12, 16]
    K1 = [20, 24]
    VV = [28, 36]
    SS = [44, 60]
    P = 76
    O = 84
    T = 100
    vKo, vKe, vVo, vNM, vML, vQo, vBig = 108, 109, 110, 111, 112, 113, 114
    k.maxv = max(k.maxv, 116)
    k.maxs = max(k.maxs, 36)
    sK, sKE, sV, sT, sFl, sCnt, sBM = 20, 21, 22, 23, 24, 25, 26
    e(f"v_bfe_u32 v{T}, v0, 6, 3")
    e("s_nop 0")
    e(f"v_readfirstlane_b32 s16, v{T}")
    e("s_nop 3")
    e("s_lshl_b32 s17, s2, 3")
    e("s_add_u32 s16, s16, s17")
    if wbase:
        e(f"s_add_u32 s16, s16, {wbase}")
    e("s_lshr_b32 s17, s16, 6")
    e("s_and_b32 s18, s16, 63")
    e(f"v_and_b32 v{T}, 31, v0")
    e(f"v_bfe_u32 v{T+1}, v0, 5, 1")
    e(f"v_mov_b32 v{vBig}, 0x80000000")
    e("s_lshl_b32 s19, s18, 5")
    e(f"v_add_u32 v{T+2}, s19, v{T}")
    e("s_movk_i32 s19, 1152")
    e(f"v_mul_lo_u32 v{T+2}, v{T+2}, s19")
    e("s_mul_i32 s19, s17, 36")
    e(f"v_add_u32 v{vQo}, s19, v{T+2}")
    e(f"v_lshl_add_u32 v{T+2}, v{T+1}, 4, v{vQo}")
    e(f"buffer_load_dwordx4 v[{Q0}:{Q0+3}], v{T+2}, s[4:7], 0 offen")
    e(f"v_cmp_eq_u32 vcc, 0, v{T+1}")
    e("s_nop 1")
    e(f"v_cndmask_b32 v{T+3}, v{vBig}, v{vQo}, vcc")
    e(f"buffer_load_dword v{Q1}, v{T+3}, s[4:7], 0 offen offset:32")
    e(f"v_cndmask_b32 v{vML}, 0, -1, vcc")
    e(f"v_mov_b32 v{Q1+1}, 0")
    e(f"v_mov_b32 v{Q1+2}, 0")
    e(f"v_mov_b32 v{Q1+3}, 0")
    e(f"v_mov_b32 v{vNM}, 0")
    e(f"v_lshlrev_b32 v{vKo}, 5, v{T}")
    e(f"v_lshl_add_u32 v{vKo}, v{T+1}, 4, v{vKo}")
    e(f"v_lshlrev_b32 v{vKe}, 2, v{T}")
    e(f"v_add_u32 v{vKe}, {WS_KE - WS_KM}, v{vKe}")
    e(f"v_min_u32 v{vVo}, 18, v{T}")
    e(f"v_lshl_add_u32 v{vVo}, v{T+1}, 5, v{vVo}")
    e(f"v_lshlrev_b32 v{vVo}, 4, v{vVo}")
    e(f"v_add_u32 v{vVo}, {WS_VT - WS_KM}, v{vVo}")
    for b in range(2):
        e(f"v_mov_b32 v{K1[b]+1}, 0x3f80")
        e(f"v_mov_b32 v{K1[b]+2}, 0")
        e(f"v_mov_b32 v{K1[b]+3}, 0")
    vSo = 115
    e(f"v_and_b32 v{vSo}, 63, v0")
    e(f"v_lshlrev_b32 v{vSo}, 4, v{vSo}")
    e("s_mul_i32 s27, s16, 3072")
    if part in (0, 2):
        for r in range(16):
            e(f"v_mov_b32 v{O+r}, 0")
        e(f"s_mov_b32 s{sT}, 0xff800000")
        e(f"s_mov_b32 s{sFl}, 0xff800000")
    else:
        for q in range(3):
            e(f"buffer_load_dwordx4 v[{O+4*q}:{O+4*q+3}], v{vSo}, s[28:31], s27 offen offset:{1024*q}")
        for r in range(12, 16):
            e(f"v_mov_b32 v{O+r}, 0")
        e(f"s_mov_b32 s{sT}, 0x41000000")
        e(f"s_mov_b32 s{sFl}, 0")
    e(f"s_mov_b32 s{sBM}, 0x{bar_mask:08x}")

    def loadK(b):
        if os.environ.get("ATT_NOLOAD") and getattr(k, "inloop", False):
            return
        e(f"buffer_load_dwordx4 v[{KM[b]}:{KM[b]+3}], v{vKo}, s[8:11], s{sK} offen")
        e(f"buffer_load_dword v{K1[b]}, v{vKe}, s[8:11], s{sKE} offen")
        e(f"s_add_u32 s{sK}, s{sK}, 1024")
        e(f"s_add_u32 s{sKE}, s{sKE}, 128")

    def loadV(b):
        if os.environ.get("ATT_NOLOAD") and getattr(k, "inloop", False):
            return
        e(f"buffer_load_dwordx4 v[{VV[b]}:{VV[b]+3}], v{vVo}, s[8:11], s{sV} offen")
        e(f"buffer_load_dwordx4 v[{VV[b]+4}:{VV[b]+7}], v{vVo}, s[8:11], s{sV} offen offset:1024")
        e(f"s_add_u32 s{sV}, s{sV}, 2048")

    p1 = 1 if part == 1 else 0
    e(f"s_mov_b32 s{sK}, {p1 * 32 * 1024}")
    e(f"s_mov_b32 s{sKE}, {p1 * 32 * 128}")
    e(f"s_mov_b32 s{sV}, {p1 * 32 * 2048}")
    loadK(0)
    loadK(1)
    loadV(0)
    e("s_waitcnt vmcnt(4)")
    if part == 1:
        e(f"v_mov_b32 v{vNM}, v{O+11}")
        e(f"v_lshrrev_b32 v{T+3}, 16, v{O+11}")
        e(f"v_and_b32 v{Q1+1}, v{T+3}, v{vML}")
        e("s_nop 1")
    s0 = SS[0]
    e(f"v_mfma_f32_32x32x16_bf16 v[{s0}:{s0+15}], v[{KM[0]}:{KM[0]+3}], v[{Q0}:{Q0+3}], 0")
    e(f"v_mfma_f32_32x32x16_bf16 v[{s0}:{s0+15}], v[{K1[0]}:{K1[0]+3}], v[{Q1}:{Q1+3}], v[{s0}:{s0+15}]")
    loadK(0)
    loadV(1)
    e(f"s_mov_b32 s{sCnt}, 0")
    e("s_nop 7")
    e("s_nop 7")
    k.stamp(1, 1)
    loop = k.newlabel("loop")
    k.label(loop)
    k.inloop = True
    rares = []
    for u in range(2):
        cur, nxt = u, 1 - u
        s = SS[cur]
        sn = SS[nxt]
        e(f"v_max3_f32 v{T}, v{s}, v{s+1}, v{s+2}")
        e(f"v_max3_f32 v{T+1}, v{s+3}, v{s+4}, v{s+5}")
        e(f"v_max3_f32 v{T+2}, v{s+6}, v{s+7}, v{s+8}")
        e(f"v_max3_f32 v{T+3}, v{s+9}, v{s+10}, v{s+11}")
        e(f"v_max3_f32 v{T+4}, v{s+12}, v{s+13}, v{s+14}")
        e(f"v_max3_f32 v{T}, v{T}, v{T+1}, v{s+15}")
        e(f"v_max3_f32 v{T+2}, v{T+2}, v{T+3}, v{T+4}")
        e(f"v_max_f32 v{T}, v{T}, v{T+2}")
        e(f"v_cmp_lt_f32 vcc, s{sT}, v{T}")
        rl = k.newlabel("rare")
        bk = k.newlabel("back")
        rares.append((rl, bk, s, sn))
        e(f"s_cbranch_vccnz {rl}")
        k.label(bk)
        e("s_waitcnt vmcnt(6)")
        e(f"v_mfma_f32_32x32x16_bf16 v[{sn}:{sn+15}], v[{KM[nxt]}:{KM[nxt]+3}], v[{Q0}:{Q0+3}], 0")
        for r in range(4):
            e(f"v_exp_f32 v{s+r}, v{s+r}")
        e(f"v_mfma_f32_32x32x16_bf16 v[{sn}:{sn+15}], v[{K1[nxt]}:{K1[nxt]+3}], v[{Q1}:{Q1+3}], v[{sn}:{sn+15}]")
        loadK(nxt)
        for r in range(4, 8):
            e(f"v_exp_f32 v{s+r}, v{s+r}")
        for r in range(4):
            e(f"v_cvt_pk_bf16_f32 v{P+r}, v{s+2*r}, v{s+2*r+1}")
        e(f"v_exp_f32 v{s+8}, v{s+8}")
        e(f"v_exp_f32 v{s+9}, v{s+9}")
        e("s_waitcnt vmcnt(6)")
        v = VV[cur]
        e(f"v_mfma_f32_32x32x16_bf16 v[{O}:{O+15}], v[{v}:{v+3}], v[{P}:{P+3}], v[{O}:{O+15}]")
        for r in range(10, 16):
            e(f"v_exp_f32 v{s+r}, v{s+r}")
        for r in range(4, 8):
            e(f"v_cvt_pk_bf16_f32 v{P+r}, v{s+2*r}, v{s+2*r+1}")
        e("s_nop 1")
        e(f"v_mfma_f32_32x32x16_bf16 v[{O}:{O+15}], v[{v+4}:{v+7}], v[{P+4}:{P+7}], v[{O}:{O+15}]")
        loadV(cur)
        if bar_mask and (part != 2 or u == 1):
            nb = k.newlabel("nobar")
            e(f"s_bitcmp1_b32 s{sBM}, s{sCnt}")
            e(f"s_cbranch_scc0 {nb}")
            e("s_barrier")
            k.label(nb)
        if part != 2 or u == 1:
            e(f"s_add_u32 s{sCnt}, s{sCnt}, 1")
    e(f"s_cmp_lt_u32 s{sCnt}, 32")
    e(f"s_cbranch_scc1 {loop}")
    k.stamp(2, 1)
    e("s_nop 15")
    e("s_nop 3")
    if part == 0:
        e(f"v_mov_b32 v{O+11}, v{vNM}")
        for q in range(3):
            e(f"buffer_store_dwordx4 v[{O+4*q}:{O+4*q+3}], v{vSo}, s[28:31], s27 offen offset:{1024*q}{STF}")
        e(f"s_branch {done}")
    e(f"v_mov_b32 v{T}, v{O+10}")
    e(f"v_mov_b32 v{T+1}, v{O+10}")
    e("s_nop 1")
    e(f"v_permlane32_swap_b32 v{T}, v{T+1}")
    e("s_nop 1")
    e(f"v_rcp_f32 v{T}, v{T}")
    e("s_nop 0")
    for r in range(10):
        e(f"v_mul_f32 v{O+r}, v{O+r}, v{T}")
    for r in range(5):
        e(f"v_cvt_pk_bf16_f32 v{O+r}, v{O+2*r}, v{O+2*r+1}")
    e(f"v_bfe_u32 v{T+1}, v0, 5, 1")
    e(f"v_lshl_add_u32 v{T+2}, v{T+1}, 3, v{vQo}")
    e(f"buffer_store_dwordx2 v[{O}:{O+1}], v{T+2}, s[12:15], 0 offen")
    e(f"buffer_store_dwordx2 v[{O+2}:{O+3}], v{T+2}, s[12:15], 0 offen offset:16")
    e(f"v_cmp_eq_u32 vcc, 0, v{T+1}")
    e("s_nop 1")
    e(f"v_cndmask_b32 v{T+3}, v{vBig}, v{vQo}, vcc")
    e(f"buffer_store_dword v{O+4}, v{T+3}, s[12:15], 0 offen offset:32")
    e(f"s_branch {done}")
    for (rl, bk, s, sn) in rares:
        k.label(rl)
        e(f"v_mov_b32 v{T+1}, v{T}")
        e("s_nop 7")
        e(f"v_permlane32_swap_b32 v{T}, v{T+1}")
        e("s_nop 1")
        e(f"v_max_f32 v{T}, v{T}, v{T+1}")
        e(f"v_max_f32 v{T}, s{sFl}, v{T}")
        e(f"v_sub_f32 v{T+1}, v{vNM}, v{T}")
        e(f"v_cvt_pk_bf16_f32 v{T+1}, v{T+1}, v{T+1}")
        e(f"v_lshlrev_b32 v{T+1}, 16, v{T+1}")
        e(f"v_sub_f32 v{T+2}, v{vNM}, v{T+1}")
        e(f"v_mov_b32 v{vNM}, v{T+1}")
        e(f"v_lshrrev_b32 v{T+3}, 16, v{T+1}")
        e(f"v_and_b32 v{Q1+1}, v{T+3}, v{vML}")
        e(f"v_exp_f32 v{T+3}, -v{T+2}")
        e("s_nop 7")
        e(f"v_min_f32 v{T+3}, 1.0, v{T+3}")
        for r in range(16):
            e(f"v_sub_f32 v{s+r}, v{s+r}, v{T+2}")
        for r in range(11):
            e(f"v_mul_f32 v{O+r}, v{O+r}, v{T+3}")
        e(f"s_mov_b32 s{sT}, 0x41000000")
        e(f"s_mov_b32 s{sFl}, 0")
        e(f"s_branch {bk}")


def split_roles(k, attl):
    e = k.e
    e("v_lshrrev_b32 v1, 9, v0")
    e("s_nop 0")
    e("v_readfirstlane_b32 s3, v1")
    e("s_nop 3")
    e("s_cmp_lg_u32 s3, 0")
    e(f"s_cbranch_scc1 {attl}")


def mask_of(its):
    m = 0
    for i in its:
        m |= 1 << i
    return m


HEADER = open("parallel_sum__grouped_kv_mqa__mixer_channel_mlp__prompt.s.ref").read().split("; Override launch")[0]


def emit(kernels, launches):
    out = [HEADER.rstrip()]
    for (kn, grid, block, lds) in launches:
        out.append(f"; @launch kernel={kn} grid=({grid},1,1) block=({block},1,1) lds={lds}")
    out.append('.amdgcn_target "amdgcn-amd-amdhsa--gfx950"')
    out.append(".text")
    for k in kernels:
        out.append(f".globl {k.name}")
        out.append(".p2align 8")
        out.append(f".type {k.name},@function")
        out.append(f"{k.name}:")
        out.append(k.text())
    out.append('.section .rodata,"a"')
    for k in kernels:
        nv = k.maxv
        acc = -(-nv // 4) * 4
        out.append(".p2align 6")
        out.append(f".amdhsa_kernel {k.name}")
        out.append(f"  .amdhsa_next_free_vgpr {nv}")
        out.append(f"  .amdhsa_next_free_sgpr {100 if getattr(k,'stamped',False) else max(k.maxs, 16)}")
        out.append(f"  .amdhsa_accum_offset {acc}")
        out.append("  .amdhsa_group_segment_fixed_size 0")
        out.append("  .amdhsa_kernarg_size 104")
        out.append("  .amdhsa_user_sgpr_count 2")
        out.append("  .amdhsa_user_sgpr_kernarg_segment_ptr 1")
        out.append("  .amdhsa_system_sgpr_workgroup_id_x 1")
        out.append(".end_amdhsa_kernel")
    return "\n".join(out) + "\n"


def main():
    ln = gen_ln("ln_kernel")
    g1 = gen_gemm1("gemm1_kernel")
    g2 = gen_gemm2("gemm2_kernel")
    fin = gen_final("final_kernel")
    kernels = [ln, g1, g2, fin]
    launches = [("ln_kernel", 256, 256, 0),
                ("gemm1_kernel", 256, 768, g1.ldsz),
                ("gemm2_kernel", 256, 1024, g2.ldsz),
                ("final_kernel", 128, 256, fin.ldsz)]
    txt = emit(kernels, launches)
    path = sys.argv[1] if len(sys.argv) > 1 else "parallel_sum__grouped_kv_mqa__mixer_channel_mlp__prompt.s"
    open(path, "w").write(txt)
    for k in kernels:
        print(k.name, "vgpr", k.maxv, "lds", getattr(k, "ldsz", 0), "lines", len(k.L))


if __name__ == "__main__":
    main()

    open("gen_consts.py", "w").write(
        "".join(f"{n} = {globals()[n]!r}\n" for n in ["WS_XN", "WS_Y", "WS_Q", "WS_O", "WS_WKV", "WS_KM", "WS_KE", "WS_VT", "WS_H", "WS_P", "QSCALE"]))
```

```python
import math, struct, sys, os

S_TOK = 2048
D = 576
F = 4608
H = 32
DH = 18

SZ_ACT = S_TOK * D * 2
WS_XN = 0
WS_Y = WS_XN + SZ_ACT
WS_Q = WS_Y + SZ_ACT
WS_O = WS_Q + SZ_ACT
WS_WKV = WS_O + SZ_ACT
WS_KM = WS_WKV + 576 * 64 * 2
WS_KE = WS_KM + 2048 * 32
WS_VT = WS_KE + 2048 * 4
WS_H = WS_VT + 128 * 1024 + 8192
WS_P = WS_H + S_TOK * F * 2
WS_AS = WS_P + 4 * S_TOK * D * 4
WS_END = WS_AS + 2048 * 3072
WS_BYTES = 268435456
WS_DBG = 60 << 20

KA = dict(x=0, wq=8, wk=16, wv=24, wo=32, bx=40, w1=48, b1=56, w2=64, b2=72, out=80, dbg=88, ws=96)
SZ = dict(x=SZ_ACT, wq=D * D * 2, wk=D * 18 * 2, wv=D * 18 * 2, wo=D * D * 2, w1=D * F * 2, b1=F * 2,
          w2=F * D * 2, b2=D * 2, out=SZ_ACT, ws=WS_BYTES)


STF = os.environ.get('STF', ' sc1')


def f32bits(x):
    return struct.unpack('<I', struct.pack('<f', x))[0]


def magic(div, maxval):
    for sh in range(8, 31):
        M = -(-(1 << sh) // div)
        if M * maxval >= (1 << 32):
            break
        if all(((c * M) >> sh) == c // div for c in range(maxval)):
            return M, sh
    raise ValueError("no magic")


class Kern:
    def __init__(self, name):
        self.name = name
        self.L = []
        self.maxv = 0
        self.maxs = 0
        self.lbl = 0

    def e(self, s):
        self.L.append("  " + s)

    def c(self, s):
        self.L.append("  ; " + s)

    def label(self, l):
        self.L.append(l + ":")

    def newlabel(self, p="L"):
        self.lbl += 1
        return f"{self.name}_{p}{self.lbl}"

    def srd(self, sbase, arg, off=0, size=None):
        self.e(f"s_load_dwordx2 s[{sbase}:{sbase+1}], s[0:1], {KA[arg]}")
        self._pending = getattr(self, "_pending", [])
        self._pending.append((sbase, arg, off, size))

    def srd_finish(self):
        self.e("s_waitcnt lgkmcnt(0)")
        for sbase, arg, off, size in self._pending:
            if off:
                self.e(f"s_add_u32 s{sbase}, s{sbase}, {off}")
                self.e(f"s_addc_u32 s{sbase+1}, s{sbase+1}, 0")
            sz = (SZ[arg] - off) if size is None else size
            self.e(f"s_mov_b32 s{sbase+2}, {sz}")
            self.e(f"s_mov_b32 s{sbase+3}, 0x00020000")
        self._pending = []

    def stamp(self, idx, role):
        if not os.environ.get("STAMP"):
            return
        e = self.e
        e("s_memtime s[90:91]")
        e("s_load_dwordx2 s[92:93], s[0:1], 88")
        e("s_waitcnt lgkmcnt(0)")
        e("s_mov_b32 s94, 256")
        e("s_mov_b32 s95, 0x20000")
        R0, R1 = (126, 127) if self.name.startswith("gemm") else (250, 251)
        e(f"v_and_b32 v{R1}, 511, v0")
        e(f"v_cmp_eq_u32 vcc, 0, v{R1}")
        e(f"v_mov_b32 v{R1}, {(role*16+idx)*4}")
        e(f"v_mov_b32 v{R0}, 0x80000000")
        e("s_nop 1")
        e(f"v_cndmask_b32 v{R1}, v{R0}, v{R1}, vcc")
        e(f"v_mov_b32 v{R0}, s90")
        l = self.newlabel("st")
        e("s_cmp_lg_u32 s2, 3")
        e(f"s_cbranch_scc1 {l}")
        e(f"buffer_store_dword v{R0}, v{R1}, s[92:95], 0 offen")
        self.label(l)
        self.maxv = max(self.maxv, R1 + 1)
        self.stamped = True

    def wgstamp(self, slot, kidx):
        if not os.environ.get("WGSTAMP"):
            return
        e = self.e
        R0, R1 = (126, 127) if self.name.startswith("gemm") else (250, 251)
        e("s_memrealtime s[90:91]" if (slot < 2 or kidx == 2) and kidx != 1 else "s_memtime s[90:91]")
        e("s_load_dwordx2 s[92:93], s[0:1], 96")
        e("s_waitcnt lgkmcnt(0)")
        e(f"s_add_u32 s92, s92, {WS_DBG + kidx * 65536}")
        e("s_addc_u32 s93, s93, 0")
        e("s_mov_b32 s94, 65536")
        e("s_mov_b32 s95, 0x20000")
        e(f"v_and_b32 v{R1}, 511, v0")
        e(f"v_cmp_eq_u32 vcc, 0, v{R1}")
        e(f"s_lshl_b32 s96, s2, 4")
        e(f"s_add_u32 s96, s96, {slot*4}")
        e(f"v_mov_b32 v{R1}, s96")
        e(f"v_mov_b32 v{R0}, 0x80000000")
        e("s_nop 1")
        e(f"v_cndmask_b32 v{R1}, v{R0}, v{R1}, vcc")
        e(f"v_mov_b32 v{R0}, s90")
        e(f"buffer_store_dword v{R0}, v{R1}, s[92:95], 0 offen")
        self.maxv = max(self.maxv, R1 + 1)
        self.stamped = True

    def text(self):
        return "\n".join(self.L)


def vr(a, n=1):
    return f"v{a}" if n == 1 else f"v[{a}:{a+n-1}]"


def sr(a, n=1):
    return f"s{a}" if n == 1 else f"s[{a}:{a+n-1}]"


def gen_ln(name):
    k = Kern(name)
    e = k.e
    done = k.newlabel("done")
    e("s_cmp_ge_u32 s2, 256")
    e(f"s_cbranch_scc1 {done}")
    k.srd(4, "x")
    k.srd(8, "ws", WS_XN, SZ_ACT)
    k.srd(12, "ws", WS_Y, SZ_ACT)
    k.srd(16, "wk")
    k.srd(20, "wv")
    k.srd(24, "ws", WS_WKV, 576 * 64 * 2)
    k.srd(32, "w1")
    k.srd(36, "wq")
    k.srd_finish()
    e("v_lshrrev_b32 v1, 5, v0")
    e("s_lshl_b32 s3, s2, 3")
    e("v_add_u32 v1, s3, v1")
    e("s_movk_i32 s28, 1152")
    e("v_mul_lo_u32 v1, v1, s28")
    e("v_and_b32 v2, 31, v0")
    e("v_lshl_add_u32 v1, v2, 2, v1")
    X = 4
    for i in range(9):
        e(f"buffer_load_dword v{X+i}, v1, s[4:7], 0 offen offset:{128*i}")
    skip = k.newlabel("skipw")
    e("s_cmp_ge_u32 s2, 144")
    e(f"s_cbranch_scc1 {skip}")
    e("v_lshrrev_b32 v60, 6, v0")
    e("s_lshl_b32 s3, s2, 2")
    e("v_add_u32 v60, s3, v60")
    e("v_and_b32 v61, 63, v0")
    e("v_mul_u32_u24 v62, 36, v60")
    e("v_lshl_add_u32 v63, v61, 1, v62")
    e("v_mov_b32 v58, 0x80000000")
    e("v_cmp_gt_u32 vcc, 18, v61")
    e("s_nop 1")
    e("v_cndmask_b32 v63, v58, v63, vcc")
    e("v_subrev_u32 v59, 32, v61")
    e("v_lshl_add_u32 v57, v59, 1, v62")
    e("v_cmp_gt_u32 vcc, 18, v59")
    e("s_nop 1")
    e("v_cndmask_b32 v57, v58, v57, vcc")
    e("buffer_load_ushort v56, v63, s[16:19], 0 offen")
    e("buffer_load_ushort v55, v57, s[20:23], 0 offen")
    e("v_lshlrev_b32 v60, 7, v60")
    e("v_lshl_add_u32 v60, v61, 1, v60")
    e("s_waitcnt vmcnt(0)")
    e("v_or_b32 v56, v56, v55")
    e("buffer_store_short v56, v60, s[24:27], 0 offen")
    k.label(skip)
    e("s_waitcnt vmcnt(0)")
    if not os.environ.get("NOPF"):
        e("v_lshlrev_b32 v74, 4, v0")
        e("s_lshl_b32 s3, s2, 12")
        for i in range(6):
            e(f"s_add_u32 s29, s3, {i * 256 * 4096}")
            e(f"buffer_load_dwordx4 v[76:79], v74, s[32:35], s29 offen")
        e(f"buffer_load_dwordx4 v[76:79], v74, s[36:39], s3 offen")
    E = 16
    T = 40

    def unpack(src0):
        for i in range(9):
            e(f"v_lshlrev_b32 v{E+2*i}, 16, v{src0+i}")
            e(f"v_and_b32 v{E+2*i+1}, 0xffff0000, v{src0+i}")

    def reduce32(r, t):
        for mod in ("quad_perm:[1,0,3,2]", "quad_perm:[2,3,0,1]", "row_half_mirror", "row_mirror"):
            e("s_nop 1")
            e(f"v_add_f32_dpp v{t}, v{r}, v{r} {mod} row_mask:0xf bank_mask:0xf")
            e(f"v_mov_b32 v{r}, v{t}")
        e(f"ds_swizzle_b32 v{t}, v{r} offset:0x401F")
        e("s_waitcnt lgkmcnt(0)")
        e(f"v_add_f32 v{r}, v{r}, v{t}")

    def bf16r(r):
        e(f"v_cvt_pk_bf16_f32 v{r}, v{r}, v{r}")
        e(f"v_lshlrev_b32 v{r}, 16, v{r}")

    def layernorm(dst):
        e(f"v_add_f32 v{T}, v{E}, v{E+1}")
        for i in range(2, 18):
            e(f"v_add_f32 v{T}, v{T}, v{E+i}")
        reduce32(T, T + 1)
        e(f"v_mul_f32 v{T}, 0x{f32bits(1.0/576):08x}, v{T}")
        e(f"v_sub_f32 v{T+2}, v{E}, v{T}")
        e(f"v_mul_f32 v{T+3}, v{T+2}, v{T+2}")
        for i in range(1, 18):
            e(f"v_sub_f32 v{T+2}, v{E+i}, v{T}")
            e(f"v_fmac_f32 v{T+3}, v{T+2}, v{T+2}")
        reduce32(T + 3, T + 1)
        e(f"v_mul_f32 v{T+3}, 0x{f32bits(1.0/576):08x}, v{T+3}")
        bf16r(T)
        bf16r(T + 3)
        e(f"v_add_f32 v{T+3}, 0x{f32bits(1e-5):08x}, v{T+3}")
        bf16r(T + 3)
        e(f"v_sqrt_f32 v{T+3}, v{T+3}")
        e("s_nop 0")
        bf16r(T + 3)
        e(f"v_rcp_f32 v{T+3}, v{T+3}")
        for i in range(9):
            e(f"v_sub_f32 v{T+4}, v{E+2*i}, v{T}")
            e(f"v_sub_f32 v{T+5}, v{E+2*i+1}, v{T}")
            e(f"v_cvt_pk_bf16_f32 v{T+4}, v{T+4}, v{T+5}")
            e(f"v_and_b32 v{T+5}, 0xffff0000, v{T+4}")
            e(f"v_lshlrev_b32 v{T+4}, 16, v{T+4}")
            e(f"v_mul_f32 v{T+4}, v{T+4}, v{T+3}")
            e(f"v_mul_f32 v{T+5}, v{T+5}, v{T+3}")
            e(f"v_cvt_pk_bf16_f32 v{dst+i}, v{T+4}, v{T+5}")

    unpack(X)
    layernorm(X)
    for i in range(9):
        e(f"buffer_store_dword v{X+i}, v1, s[8:11], 0 offen offset:{128*i}")
    unpack(X)
    Y = 64
    layernorm(Y)
    for i in range(9):
        e(f"buffer_store_dword v{Y+i}, v1, s[12:15], 0 offen offset:{128*i}")
    k.label(done)
    e("s_endpgm")
    k.maxv = 80
    k.maxs = 40
    return k


class Gemm:
    def __init__(self, k, cfg):
        self.k = k
        self.__dict__.update(cfg)
        self.TM = self.wm * self.mt * 16
        self.RS = self.nt * 32
        self.gap = cfg.get("gap", 128)
        self.CGv = 8 * self.RS // 16
        self.CG = self.CGv + self.gap // 16
        self.xbytes = self.TM * 128
        nch = 8 * self.CG
        self.NWV = self.wm * self.wk
        self.nWtot = -(-nch // 64)
        self.nWd = -(-self.nWtot // self.NWV)
        self.wbytes = self.nWtot * 1024
        self.stage_bytes = self.xbytes + self.wbytes
        self.nXd = self.xbytes // 1024 // self.NWV
        assert self.nXd % 2 == 0 or self.nXd == 1
        self.lb = cfg.get('lds_base', 0)
        self.lds = self.lb + self.nbuf * self.stage_bytes
        assert self.lds <= 163840

    def body(self, sX, sW, s_xoff, s_woff, vbase, acc_init=None):
        k = self.k
        e = k.e
        mt, nt, wm, wk, NB = self.mt, self.nt, self.wm, self.wk, self.nbuf
        v = vbase
        self.ACC = ACC = v; v += 4 * mt * nt
        nxb = 2 if wk == 1 else 1
        XF = [v + 4 * mt * i for i in range(nxb)]; v += 4 * mt * nxb
        NW = cfg_nw = self.__dict__.get('nw', 4)
        WF = [v + 4 * i for i in range(NW)]; v += 4 * NW
        vXa = [[v + 2 * b, v + 2 * b + 1] for b in range(NB)]; v += 2 * NB
        vWa = [v + b for b in range(NB)]; v += NB
        vXg = [v, v + 1]; v += 2
        vWg = [v + i for i in range(self.nWd)]; v += self.nWd
        vt = [v, v + 1, v + 2, v + 3]; v += 4
        self.vfree = v - 4
        self.vt = vt
        k.maxv = max(k.maxv, v)
        SW, SWM, SWK, SXB, SLX, SLW, ST = 40, 41, 42, 43, 44, 45, 46
        self.s_wave, self.s_wm, self.s_wk = SW, SWM, SWK
        k.stamp(0, 0)
        e(f"v_lshrrev_b32 v{vt[0]}, 6, v0")
        e("s_nop 0")
        e(f"v_readfirstlane_b32 s{SW}, v{vt[0]}")
        e(f"v_and_b32 v{vt[1]}, 63, v0")
        lane = vt[1]
        e("s_nop 2")
        if wk == 1:
            e(f"s_mov_b32 s{SWM}, s{SW}")
            e(f"s_mov_b32 s{SWK}, 0")
        else:
            assert wk == 2 and wm in (2, 4)
            e(f"s_and_b32 s{SWM}, s{SW}, {wm - 1}")
            e(f"s_lshr_b32 s{SWK}, s{SW}, {1 if wm == 2 else 2}")
        XB = self.__dict__.get("xblk", 0)
        e(f"v_lshrrev_b32 v{vt[0]}, 3, v{lane}")
        if XB:
            e(f"v_lshlrev_b32 v{vt[0]}, 4, v{vt[0]}")
        else:
            e(f"s_mov_b32 s{ST}, {self.XS}")
            e(f"v_mul_lo_u32 v{vt[0]}, v{vt[0]}, s{ST}")
        e(f"v_lshrrev_b32 v{vt[2]}, 4, v{lane}")
        e(f"v_and_b32 v{vt[3]}, 7, v{lane}")
        e(f"v_xor_b32 v{vt[2]}, v{vt[2]}, v{vt[3]}")
        if self.nXd == 1:
            e(f"s_and_b32 s{ST}, s{SW}, 1")
            e(f"s_lshl_b32 s{ST}, s{ST}, 2")
            e(f"v_xor_b32 v{vt[2]}, s{ST}, v{vt[2]}")
        e(f"v_lshl_add_u32 v{vXg[0]}, v{vt[2]}, {8 if XB else 4}, v{vt[0]}")
        e(f"v_xor_b32 v{vt[2]}, 4, v{vt[2]}")
        e(f"v_lshl_add_u32 v{vXg[1]}, v{vt[2]}, {8 if XB else 4}, v{vt[0]}")
        if XB:
            e(f"v_lshlrev_b32 v{vXg[0]}, 4, v{lane}")
            e(f"v_add_u32 v{vXg[1]}, 1024, v{vXg[0]}")
        rows_pw = self.nXd * 8
        e(f"s_mul_i32 s{SXB}, s{SW}, {(rows_pw // 16 * XB) if XB else (rows_pw * self.XS)}")
        e(f"s_add_u32 s{SXB}, s{SXB}, s{s_xoff}")
        e(f"s_mul_i32 s{SLX}, s{SW}, {self.nXd * 1024}")
        e(f"s_lshl_b32 s{SLW}, s{SW}, 10")
        e(f"s_add_u32 s{SLW}, s{SLW}, {self.xbytes}")
        nch_max = self.nWd * self.NWV * 64
        M1, sh1 = magic(self.CG, nch_max)
        M2, sh2 = magic(self.RS // 16, self.CG)
        for i in range(self.nWd):
            e(f"s_lshl_b32 s{ST}, s{SW}, 6")
            e(f"s_add_u32 s{ST}, s{ST}, {i * 64 * self.NWV}")
            e(f"v_add_u32 v{vt[0]}, s{ST}, v{lane}")
            e(f"s_mov_b32 s{ST}, {M1}")
            e(f"v_mul_lo_u32 v{vt[2]}, v{vt[0]}, s{ST}")
            e(f"v_lshrrev_b32 v{vt[2]}, {sh1}, v{vt[2]}")
            e(f"v_mul_u32_u24 v{vt[3]}, {self.CG}, v{vt[2]}")
            e(f"v_sub_u32 v{vt[0]}, v{vt[0]}, v{vt[3]}")
            e(f"v_mul_u32_u24 v{vt[3]}, {M2}, v{vt[0]}")
            e(f"v_lshrrev_b32 v{vt[3]}, {sh2}, v{vt[3]}")
            g = vWg[i]
            e(f"v_mul_u32_u24 v{g}, {self.RS // 16}, v{vt[3]}")
            e(f"v_sub_u32 v{g}, v{vt[0]}, v{g}")
            e(f"v_lshlrev_b32 v{g}, 4, v{g}")
            e(f"v_lshl_add_u32 v{vt[3]}, v{vt[2]}, 3, v{vt[3]}")
            e(f"s_mov_b32 s{ST}, {self.WSb}")
            e(f"v_mul_lo_u32 v{vt[3]}, v{vt[3]}, s{ST}")
            e(f"v_add_u32 v{g}, v{g}, v{vt[3]}")
            e(f"v_cmp_gt_u32 vcc, {self.CGv}, v{vt[0]}")
            e(f"v_cmp_gt_u32 s[48:49], 8, v{vt[2]}")
            e("s_nop 1")
            e("s_and_b64 vcc, vcc, s[48:49]")
            e(f"v_mov_b32 v{vt[3]}, 0x80000000")
            e("s_nop 1")
            e(f"v_cndmask_b32 v{g}, v{vt[3]}, v{g}, vcc")

        def dma_list(st):
            buf = self.lb + (st % NB) * self.stage_bytes
            out = []
            for i in range(self.nXd):
                out.append([f"s_add_u32 m0, s{SLX}, {buf + i * 1024}",
                            f"s_add_u32 s{ST}, s{SXB}, {((i // 2) * XB + st * 2048) if XB else (i * 8 * self.XS + st * 128)}",
                            f"buffer_load_dwordx4 v{vXg[i & 1]}, s[{sX}:{sX+3}], s{ST} offen lds"])
            for i in range(self.nWd):
                g = [f"s_add_u32 m0, s{SLW}, {buf + i * self.NWV * 1024}",
                     f"s_add_u32 s{ST}, s{s_woff}, {st * 64 * self.WSb}",
                     f"buffer_load_dwordx4 v{vWg[i]}, s[{sW}:{sW+3}], s{ST} offen lds"]
                nval = self.nWtot - i * self.NWV
                if nval < self.NWV:
                    lb = k.newlabel("wsk")
                    g = [f"s_cmp_ge_u32 s{SW}, {nval}", f"s_cbranch_scc1 {lb}"] + g + [f"{lb}:"]
                out.append(g)
            return out

        nD = self.nXd + self.nWtot // self.NWV
        self.pro_dma = min(NB - 1, self.nst) * nD
        if getattr(self, "pre_init", None):
            self.pre_init(self)
        for st in range(min(NB - 1, self.nst)):
            for g in dma_list(st):
                for l in g:
                    e(l)
        e(f"v_and_b32 v{vt[0]}, 15, v{lane}")
        e(f"v_lshrrev_b32 v{vt[2]}, 4, v{lane}")
        e(f"v_lshrrev_b32 v{vt[3]}, 1, v{vt[0]}")
        e(f"v_xor_b32 v{vt[3]}, v{vt[3]}, v{vt[2]}")
        if XB:
            e(f"v_lshlrev_b32 v{vt[0]}, 4, v{vt[0]}")
            e(f"v_lshl_add_u32 v{vXa[0][0]}, v{vt[2]}, 8, v{vt[0]}")
        else:
            e(f"v_lshlrev_b32 v{vt[0]}, 7, v{vt[0]}")
            e(f"v_lshl_add_u32 v{vXa[0][0]}, v{vt[3]}, 4, v{vt[0]}")
        e(f"s_mul_i32 s{ST}, s{SWM}, {mt * 16 * 128}")
        e(f"v_add_u32 v{vXa[0][0]}, s{ST}, v{vXa[0][0]}")
        if wk == 2:
            e(f"s_lshl_b32 s{ST}, s{SWK}, {10 if XB else 6}")
            e(f"v_xor_b32 v{vXa[0][0]}, s{ST}, v{vXa[0][0]}")
        e(f"v_xor_b32 v{vXa[0][1]}, {1024 if XB else 64}, v{vXa[0][0]}")
        e(f"v_bfe_u32 v{vt[0]}, v{lane}, 2, 2")
        e(f"v_lshl_add_u32 v{vt[0]}, v{vt[2]}, 3, v{vt[0]}")
        e(f"v_mul_u32_u24 v{vt[0]}, {self.RS}, v{vt[0]}")
        e(f"v_mul_u32_u24 v{vt[3]}, {self.gap}, v{vt[2]}")
        e(f"v_add_u32 v{vt[0]}, v{vt[0]}, v{vt[3]}")
        e(f"v_and_b32 v{vt[3]}, 3, v{lane}")
        e(f"v_lshl_add_u32 v{vWa[0]}, v{vt[3]}, 3, v{vt[0]}")
        KSW = 32 * self.RS + 4 * self.gap
        if wk == 2:
            e(f"s_mul_i32 s{ST}, s{SWK}, {KSW}")
            e(f"s_add_u32 s{ST}, s{ST}, {self.xbytes}")
        else:
            e(f"s_mov_b32 s{ST}, {self.xbytes}")
        e(f"v_add_u32 v{vWa[0]}, s{ST}, v{vWa[0]}")
        if self.lb:
            e(f"v_add_u32 v{vXa[0][0]}, {self.lb}, v{vXa[0][0]}")
            e(f"v_add_u32 v{vXa[0][1]}, {self.lb}, v{vXa[0][1]}")
            e(f"v_add_u32 v{vWa[0]}, {self.lb}, v{vWa[0]}")
        for b in range(1, NB):
            e(f"v_add_u32 v{vXa[b][0]}, {b * self.stage_bytes}, v{vXa[0][0]}")
            e(f"v_add_u32 v{vXa[b][1]}, {b * self.stage_bytes}, v{vXa[0][1]}")
            e(f"v_add_u32 v{vWa[b]}, {b * self.stage_bytes}, v{vWa[0]}")
        if acc_init is None:
            for r in range(4 * mt * nt):
                e(f"v_mov_b32 v{ACC + r}, 0")
        else:
            acc_init(self)
        extra_vm = getattr(self, "extra_vm", 0)
        fifo = []

        def issue(idn, line):
            e(line)
            fifo.append(idn)

        def need(ids):
            pos = max((fifo.index(i) for i in ids if i in fifo), default=-1)
            if pos >= 0:
                n = len(fifo) - 1 - pos
                e(f"s_waitcnt lgkmcnt({min(n, 15)})")
                del fifo[:pos + 1]

        PF = NW - 1
        nks = 2 if wk == 1 else 1
        nsteps = nks * nt
        for st in range(self.nst):
            aX = vXa[st % NB]
            aW = vWa[st % NB]
            inflight = min(NB - 2, self.nst - 1 - st)
            e(f"s_waitcnt vmcnt({min(63, inflight * nD)})")
            e("s_barrier")
            if st < 13:
                k.stamp(1 + st, 0)
            dmas = dma_list(st + NB - 1) if st + NB - 1 < self.nst else []
            if os.environ.get("G_NODMA"):
                dmas = []

            def rdX(ks):
                for i in range(mt):
                    issue(("X", ks, i), f"ds_read_b128 v[{XF[ks]+4*i}:{XF[ks]+4*i+3}], v{aX[ks]} offset:{2048*i}")

            def rdW(t):
                ks, j = divmod(t, nt)
                w = WF[t % NW]
                o = ks * KSW + 32 * j
                issue(("W", t, 0), f"ds_read_b64_tr_b16 v[{w}:{w+1}], v{aW} offset:{o}")
                issue(("W", t, 1), f"ds_read_b64_tr_b16 v[{w+2}:{w+3}], v{aW} offset:{o + 4*self.RS}")

            rdW(0)
            rdX(0)
            for t in range(1, min(PF, nsteps)):
                rdW(t)
            per = -(-len(dmas) // nsteps)
            for t in range(nsteps):
                ks, j = divmod(t, nt)
                if t + PF < nsteps:
                    rdW(t + PF)
                if nks == 2 and t == min(2, nt - 1):
                    rdX(1)
                for _ in range(per):
                    if dmas:
                        for l in dmas.pop(0):
                            e(l)
                ids = [("W", t, 0), ("W", t, 1)]
                if j == 0:
                    ids += [("X", ks, i) for i in range(mt)]
                need(ids)
                w = WF[t % NW]
                for i in range(mt if not os.environ.get("G_NOMFMA") else 0):
                    a = ACC + 4 * (i * nt + j)
                    e(f"v_mfma_f32_16x16x32_bf16 v[{a}:{a+3}], v[{w}:{w+3}], v[{XF[ks]+4*i}:{XF[ks]+4*i+3}], v[{a}:{a+3}]")
            assert not dmas
            assert not fifo
        e("s_nop 7")
        e("s_nop 7")
        k.stamp(14, 0)


GELU_C0 = -2.0 * math.log2(math.e) * math.sqrt(2.0 / math.pi)
GELU_C1 = GELU_C0 * 0.044715
QSCALE = math.log2(math.e) / math.sqrt(18.0)


def lane_consts(k, g, v_tok, v_g):
    k.e(f"v_and_b32 v{v_tok}, 15, v0")
    k.e(f"v_bfe_u32 v{v_g}, v0, 4, 2")


def qkv_body(k, lds_base, done):
    e = k.e
    kvl = k.newlabel("kv")
    e("v_subrev_u32 v0, 512, v0")
    pfl = k.newlabel("pf")
    e("s_cmp_ge_u32 s2, 160")
    e(f"s_cbranch_scc1 {pfl}")
    k.srd(4, "ws", WS_XN, SZ_ACT)
    k.srd(8, "wq")
    k.srd(12, "ws", WS_Q, SZ_ACT)
    k.srd(16, "ws", WS_WKV, 576 * 64 * 2)
    k.srd(20, "ws", WS_KM, WS_H - WS_KM)
    k.srd_finish()
    e("s_cmp_ge_u32 s2, 128")
    e(f"s_cbranch_scc1 {kvl}")
    g = Gemm(k, dict(mt=1, nt=9, wm=4, wk=1, nst=9, XS=1152, WSb=1152, nbuf=2, nw=8, lds_base=lds_base))
    e("s_lshr_b32 s30, s2, 2")
    e("s_and_b32 s31, s2, 3")
    e(f"s_mul_i32 s32, s30, {64 * 1152}")
    e(f"s_mul_i32 s33, s31, {144 * 2}")
    g.body(4, 8, 32, 33, 4)
    vt = g.vfree
    lane_consts(k, g, vt, vt + 1)
    e(f"s_lshl_b32 s34, s{g.s_wm}, 4")
    e(f"v_add_u32 v{vt}, s34, v{vt}")
    e(f"s_movk_i32 s34, 1152")
    e(f"v_mul_lo_u32 v{vt}, v{vt}, s34")
    e(f"v_lshl_add_u32 v{vt}, v{vt+1}, 3, v{vt}")
    e(f"s_add_u32 s34, s32, s33")
    e(f"s_mov_b32 s35, 0x{f32bits(QSCALE):08x}")
    for j in range(9):
        a = g.ACC + 4 * j
        for r in range(4):
            e(f"v_mul_f32 v{a+r}, s35, v{a+r}")
        e(f"v_cvt_pk_bf16_f32 v{a}, v{a}, v{a+1}")
        e(f"v_cvt_pk_bf16_f32 v{a+1}, v{a+2}, v{a+3}")
        e(f"buffer_store_dwordx2 v[{a}:{a+1}], v{vt}, s[12:15], s34 offen offset:{32*j}")
    e(f"s_branch {done}")
    k.label(kvl)
    g2 = Gemm(k, dict(mt=1, nt=4, wm=4, wk=1, nst=9, XS=1152, WSb=128, gap=32, nbuf=2, lds_base=lds_base))
    e("s_sub_u32 s30, s2, 128")
    e(f"s_mul_i32 s32, s30, {64 * 1152}")
    e("s_mov_b32 s33, 0")
    g2.body(4, 16, 32, 33, 4)
    vt = g2.vfree
    A = g2.ACC
    lane_consts(k, g2, vt, vt + 1)
    e(f"s_lshl_b32 s34, s{g2.s_wm}, 4")
    e(f"s_lshl_b32 s35, s30, 6")
    e(f"s_add_u32 s34, s34, s35")
    e(f"v_add_u32 v{vt}, s34, v{vt}")
    tk, gg, t2, t3 = vt, vt + 1, vt + 2, vt + 3
    big = A + 16
    e(f"v_mov_b32 v{big}, 0x80000000")
    e(f"v_lshrrev_b32 v{t2}, 5, v{tk}")
    e(f"v_lshlrev_b32 v{t2}, 10, v{t2}")
    e(f"v_and_b32 v{t3}, 31, v{tk}")
    e(f"v_lshl_add_u32 v{t2}, v{t3}, 4, v{t2}")
    e(f"v_lshrrev_b32 v{t3}, 1, v{gg}")
    e(f"v_lshl_add_u32 v{t2}, v{t3}, 9, v{t2}")
    e(f"v_and_b32 v{t3}, 1, v{gg}")
    e(f"v_lshl_add_u32 v{t2}, v{t3}, 3, v{t2}")
    e(f"v_cvt_pk_bf16_f32 v{A}, v{A}, v{A+1}")
    e(f"v_cvt_pk_bf16_f32 v{A+1}, v{A+2}, v{A+3}")
    e(f"buffer_store_dwordx2 v[{A}:{A+1}], v{t2}, s[20:23], 0 offen")
    e(f"v_cmp_eq_u32 vcc, 0, v{gg}")
    e(f"v_lshlrev_b32 v{t2}, 2, v{tk}")
    e(f"v_add_u32 v{t2}, {WS_KE - WS_KM}, v{t2}")
    e(f"v_cndmask_b32 v{t2}, v{big}, v{t2}, vcc")
    e(f"v_cvt_pk_bf16_f32 v{A+4}, v{A+4}, v{A+5}")
    e(f"buffer_store_dword v{A+4}, v{t2}, s[20:23], 0 offen")
    e(f"v_lshrrev_b32 v{t2}, 4, v{tk}")
    e(f"v_lshlrev_b32 v{t2}, 10, v{t2}")
    e(f"v_bfe_u32 v{t3}, v{tk}, 2, 1")
    e(f"v_lshl_add_u32 v{t2}, v{t3}, 9, v{t2}")
    e(f"v_and_b32 v{t3}, 3, v{tk}")
    e(f"v_lshl_add_u32 v{t2}, v{t3}, 1, v{t2}")
    e(f"v_bfe_u32 v{t3}, v{tk}, 3, 1")
    e(f"v_lshl_add_u32 v{t2}, v{t3}, 3, v{t2}")
    e(f"v_add_u32 v{t2}, {WS_VT - WS_KM}, v{t2}")
    e(f"v_lshl_add_u32 v{t3}, v{gg}, 6, v{t2}")
    e(f"v_cvt_pk_bf16_f32 v{A+8}, v{A+8}, v{A+9}")
    e(f"v_cvt_pk_bf16_f32 v{A+9}, v{A+10}, v{A+11}")
    e(f"buffer_store_short v{A+8}, v{t3}, s[20:23], 0 offen")
    e(f"buffer_store_short_d16_hi v{A+8}, v{t3}, s[20:23], 0 offen offset:16")
    e(f"buffer_store_short v{A+9}, v{t3}, s[20:23], 0 offen offset:32")
    e(f"buffer_store_short_d16_hi v{A+9}, v{t3}, s[20:23], 0 offen offset:48")
    e(f"v_cndmask_b32 v{t3}, v{big}, v{t2}, vcc")
    e(f"v_cvt_pk_bf16_f32 v{A+12}, v{A+12}, v{A+13}")
    e(f"v_mov_b32 v{A+13}, 0x3f80")
    e(f"buffer_store_short v{A+12}, v{t3}, s[20:23], 0 offen offset:256")
    e(f"buffer_store_short_d16_hi v{A+12}, v{t3}, s[20:23], 0 offen offset:272")
    e(f"buffer_store_short v{A+13}, v{t3}, s[20:23], 0 offen offset:288")
    e(f"s_branch {done}")
    k.label(pfl)
    if not os.environ.get("NOPF"):
        k.srd(4, "w2")
        k.srd(8, "wo")
        k.srd_finish()
        e("v_lshlrev_b32 v4, 4, v0")
        e("s_sub_u32 s3, s2, 160")
        e("s_lshl_b32 s3, s3, 12")
        for i in range(14):
            e(f"s_add_u32 s29, s3, {i * 96 * 4096}")
            e(f"buffer_load_dwordx4 v[8:11], v4, s[4:7], s29 offen")
        for i in range(2):
            e(f"s_add_u32 s29, s3, {i * 96 * 4096}")
            e(f"buffer_load_dwordx4 v[8:11], v4, s[8:11], s29 offen")
    return max(g.lds, g2.lds)


def gen_gemm1(name):
    k = Kern(name)
    e = k.e
    done = k.newlabel("done")
    e("s_cmp_ge_u32 s2, 256")
    e(f"s_cbranch_scc1 {done}")
    attl = k.newlabel("att")
    k.wgstamp(0, 2)
    split_roles(k, attl)
    k.srd(4, "ws", WS_Y, SZ_ACT)
    k.srd(8, "w1")
    k.srd(12, "ws", WS_H, S_TOK * F * 2)
    k.srd(16, "b1")
    k.srd_finish()
    g = Gemm(k, dict(mt=2, nt=9, wm=8, wk=1, nst=9, XS=1152, WSb=9216, nbuf=2))
    e("s_and_b32 s34, s2, 1")
    e("s_lshl_b32 s34, s34, 2")
    e("s_bfe_u32 s35, s2, 0x20003")
    e("s_add_u32 s30, s34, s35")
    e("s_bfe_u32 s34, s2, 0x20001")
    e("s_lshl_b32 s34, s34, 3")
    e("s_lshr_b32 s35, s2, 5")
    e("s_add_u32 s31, s34, s35")
    e(f"s_mul_i32 s32, s30, {256 * 1152}")
    e(f"s_mul_i32 s33, s31, {144 * 2}")

    def pre(g):
        t = g.vt
        e(f"v_bfe_u32 v{t[0]}, v0, 4, 2")
        e(f"v_lshlrev_b32 v{t[0]}, 3, v{t[0]}")
        A = g.ACC
        for j in range(9):
            e(f"buffer_load_dwordx2 v[{A+4*j}:{A+4*j+1}], v{t[0]}, s[16:19], s33 offen offset:{32*j}")
    g.pre_init = pre

    def init(g):
        A = g.ACC
        e(f"s_waitcnt vmcnt({g.pro_dma})")
        for j in range(9):
            a = A + 4 * j
            e(f"v_and_b32 v{a+3}, 0xffff0000, v{a+1}")
            e(f"v_lshlrev_b32 v{a+2}, 16, v{a+1}")
            e(f"v_and_b32 v{a+1}, 0xffff0000, v{a}")
            e(f"v_lshlrev_b32 v{a}, 16, v{a}")
        for i in range(1, 2):
            for r in range(36):
                e(f"v_mov_b32 v{A + 36*i + r}, v{A + r}")

    g.body(4, 8, 32, 33, 4, acc_init=init)
    vt = g.vfree
    HB = 576 * 256
    lane_consts(k, g, vt, vt + 1)
    e(f"v_lshlrev_b32 v{vt}, 4, v{vt}")
    e(f"v_and_b32 v{vt+2}, 1, v{vt+1}")
    e(f"v_lshrrev_b32 v{vt+3}, 1, v{vt+1}")
    W0 = g.ACC + 72
    e(f"v_lshl_add_u32 v{W0}, v{vt+3}, 8, v{vt}")
    e(f"v_lshl_add_u32 v{W0}, v{vt+2}, 3, v{W0}")
    e(f"v_lshl_add_u32 v{vt}, v{vt+2}, 9, v{vt}")
    e(f"v_lshl_add_u32 v{vt}, v{vt+3}, 8, v{vt}")
    e(f"s_lshl_b32 s34, s30, 4")
    e(f"s_lshl_b32 s35, s{g.s_wm}, 1")
    e(f"s_add_u32 s34, s34, s35")
    e(f"s_mul_i32 s34, s34, {HB}")
    e(f"s_mul_i32 s35, s31, {18 * 256}")
    e(f"s_add_u32 s34, s34, s35")
    e(f"s_mov_b32 s36, 0x{f32bits(GELU_C0):08x}")
    e(f"s_mov_b32 s37, 0x{f32bits(GELU_C1):08x}")
    e(f"v_mov_b32 v{vt+1}, s36")
    TT = W0 + 2

    def gelu4(a):
        for r in range(4):
            e(f"v_mul_f32 v{TT+r}, v{a+r}, v{a+r}")
        for r in range(4):
            e(f"v_fma_f32 v{TT+r}, v{TT+r}, s37, v{vt+1}")
        for r in range(4):
            e(f"v_mul_f32 v{TT+r}, v{TT+r}, v{a+r}")
        for r in range(4):
            e(f"v_exp_f32 v{TT+r}, v{TT+r}")
        for r in range(4):
            e(f"v_add_f32 v{TT+r}, 1.0, v{TT+r}")
        for r in range(4):
            e(f"v_rcp_f32 v{TT+r}, v{TT+r}")
        for r in range(4):
            e(f"v_mul_f32 v{a+r}, v{a+r}, v{TT+r}")

    for i in range(2 if not os.environ.get("G_NOEPI") else 0):
        for j in range(0, 9, 2):
            a = g.ACC + 4 * (i * 9 + j)
            e(f"s_add_u32 s35, s34, {i * HB + j * 512}")
            gelu4(a)
            e(f"v_cvt_pk_bf16_f32 v{a}, v{a}, v{a+1}")
            e(f"v_cvt_pk_bf16_f32 v{a+1}, v{a+2}, v{a+3}")
            if j < 8:
                gelu4(a + 4)
                e(f"v_cvt_pk_bf16_f32 v{a+2}, v{a+4}, v{a+5}")
                e(f"v_cvt_pk_bf16_f32 v{a+3}, v{a+6}, v{a+7}")
                e("s_nop 1")
                e(f"v_permlane16_swap_b32 v{a}, v{a+2}")
                e(f"v_permlane16_swap_b32 v{a+1}, v{a+3}")
                e(f"buffer_store_dwordx4 v[{a}:{a+3}], v{vt}, s[12:15], s35 offen{STF}")
            else:
                e(f"buffer_store_dwordx2 v[{a}:{a+1}], v{W0}, s[12:15], s35 offen{STF}")
    k.stamp(15, 0)
    k.wgstamp(1, 2)
    e("s_endpgm")
    k.label(attl)
    qlds = qkv_body(k, g.lds, done)
    k.label(done)
    e("s_endpgm")
    k.maxs = 60
    k.ldsz = qlds
    return k


def gen_gemm2(name):
    k = Kern(name)
    e = k.e
    done = k.newlabel("done")
    e("s_cmp_ge_u32 s2, 256")
    e(f"s_cbranch_scc1 {done}")
    attl = k.newlabel("att")
    k.wgstamp(0, 3)
    k.wgstamp(2, 3)
    split_roles(k, attl)
    if os.environ.get("G2_OFF"):
        e("s_endpgm")
    k.srd(4, "ws", WS_H, S_TOK * F * 2)
    k.srd(8, "w2")
    k.srd(12, "ws", WS_P, 4 * S_TOK * D * 4)
    k.srd_finish()
    g = Gemm(k, dict(mt=2, nt=9, wm=4, wk=2, nst=18, XS=9216, WSb=1152, nbuf=3, xblk=576 * 256))
    e("s_and_b32 s34, s2, 1")
    e("s_lshl_b32 s34, s34, 3")
    e("s_bfe_u32 s35, s2, 0x30003")
    e("s_add_u32 s30, s34, s35")
    e("s_lshr_b32 s36, s2, 6")
    e("s_bfe_u32 s37, s2, 0x20001")
    e(f"s_mul_i32 s32, s30, {8 * 576 * 256}")
    e(f"s_mul_i32 s34, s37, {144 * 256}")
    e("s_add_u32 s32, s32, s34")
    e(f"s_mul_i32 s33, s37, {1152 * 1152}")
    e(f"s_mul_i32 s34, s36, {144 * 2}")
    e("s_add_u32 s33, s33, s34")
    g.body(4, 8, 32, 33, 4)
    vt = g.vfree
    A = g.ACC
    e("s_barrier")
    e(f"v_and_b32 v{vt}, 63, v0")
    e(f"v_lshlrev_b32 v{vt}, 4, v{vt}")
    e(f"s_mul_i32 s34, s{g.s_wave}, {9 * 1024}")
    e(f"v_add_u32 v{vt+1}, s34, v{vt}")
    e(f"s_xor_b32 s35, s{g.s_wave}, 4")
    e(f"s_mul_i32 s34, s35, {9 * 1024}")
    e(f"v_add_u32 v{vt+2}, s34, v{vt}")
    l1 = k.newlabel("wk1")
    l2 = k.newlabel("join")
    e(f"s_cmp_eq_u32 s{g.s_wk}, 1")
    e(f"s_cbranch_scc1 {l1}")
    for q in range(9):
        e(f"ds_write_b128 v{vt+1}, v[{A+36+4*q}:{A+36+4*q+3}] offset:{1024*q}")
    e(f"s_branch {l2}")
    k.label(l1)
    for q in range(9):
        e(f"ds_write_b128 v{vt+1}, v[{A+4*q}:{A+4*q+3}] offset:{1024*q}")
    e("s_nop 1")
    for r in range(36):
        e(f"v_mov_b32 v{A+r}, v{A+36+r}")
    k.label(l2)
    e("s_waitcnt lgkmcnt(0)")
    e("s_barrier")
    for q in range(9):
        e(f"ds_read_b128 v[{A+36+4*q}:{A+36+4*q+3}], v{vt+2} offset:{1024*q}")
    e(f"s_lshl_b32 s34, s37, 7")
    e(f"s_lshl_b32 s35, s30, 3")
    e(f"s_add_u32 s34, s34, s35")
    e(f"s_lshl_b32 s35, s{g.s_wm}, 1")
    e(f"s_add_u32 s34, s34, s35")
    e(f"s_add_u32 s34, s34, s{g.s_wk}")
    e(f"s_mul_i32 s34, s34, 36")
    e(f"s_mul_i32 s35, s36, 9")
    e(f"s_add_u32 s34, s34, s35")
    e(f"s_lshl_b32 s34, s34, 10")
    for q in range(9):
        e(f"s_waitcnt lgkmcnt({8 - q})")
        a = A + 4 * q
        for r in range(4):
            e(f"v_add_f32 v{a+r}, v{a+r}, v{a+36+r}")
        e(f"s_add_u32 s35, s34, {1024 * q}")
        e(f"buffer_store_dwordx4 v[{a}:{a+3}], v{vt}, s[12:15], s35 offen{STF}")
    k.stamp(15, 0)
    k.wgstamp(1, 3)
    k.wgstamp(3, 3)
    e("s_endpgm")
    k.label(attl)
    attn_body(k, g.lds, mask_of(eval(os.environ.get('BARS2', '[0,1,4,5,8,9,12,13,16,17,20,29]'))), done)
    k.label(done)
    e("s_endpgm")
    k.maxs = max(k.maxs, 60)
    k.ldsz = g.lds + 50 * 1024
    return k


def gen_final(name):
    k = Kern(name)
    e = k.e
    done = k.newlabel("done")
    e("s_cmp_ge_u32 s2, 256")
    e(f"s_cbranch_scc1 {done}")
    k.wgstamp(0, 4)
    k.wgstamp(2, 4)
    k.srd(4, "ws", WS_O, SZ_ACT)
    k.srd(8, "wo")
    k.srd(12, "ws", WS_P, 4 * S_TOK * D * 4)
    k.srd(16, "x")
    k.srd(20, "b2")
    k.srd(24, "out")
    k.srd_finish()
    g = Gemm(k, dict(mt=1, nt=9, wm=2, wk=2, nst=9, XS=1152, WSb=1152, nbuf=6, nw=8))
    e("s_lshr_b32 s30, s2, 2")
    e("s_and_b32 s31, s2, 3")
    e(f"s_mul_i32 s32, s30, {32 * 1152}")
    e(f"s_mul_i32 s33, s31, {144 * 2}")
    EB = 108
    LB = 112
    k.maxv = max(k.maxv, LB + 9 * 8)

    def pre(g):
        lane_consts(k, g, EB, EB + 1)
        e(f"v_bfe_u32 v{EB+2}, v0, 6, 1")
        e(f"v_lshl_add_u32 v{EB}, v{EB+2}, 4, v{EB}")
        e(f"s_movk_i32 s34, 1152")
        e(f"v_mul_lo_u32 v{EB+2}, v{EB}, s34")
        e(f"v_lshl_add_u32 v{EB+2}, v{EB+1}, 3, v{EB+2}")
        e(f"v_and_b32 v{EB+3}, 63, v0")
        e(f"v_lshlrev_b32 v{EB+3}, 4, v{EB+3}")
        e(f"v_lshlrev_b32 v{EB+1}, 3, v{EB+1}")
        e(f"s_add_u32 s34, s32, s33")
        e(f"s_lshl_b32 s36, s30, 1")
        e(f"s_add_u32 s35, s{g.s_wm}, s36")
        e(f"s_mul_i32 s35, s35, 36")
        e(f"s_mul_i32 s36, s31, 9")
        e(f"s_add_u32 s35, s35, s36")
        e(f"s_lshl_b32 s35, s35, 10")
        e(f"s_mul_i32 s36, s{g.s_wk}, {2 * S_TOK * D * 4}")
        e(f"s_add_u32 s35, s35, s36")
        for j in range(9):
            B = LB + 8 * j
            for s_ in range(2):
                e(f"s_add_u32 s36, s35, {s_ * S_TOK * D * 4 + 1024 * j}")
                dst = g.ACC + 4 * j if s_ == 0 else B + 4
                e(f"buffer_load_dwordx4 v[{dst}:{dst+3}], v{EB+3}, s[12:15], s36 offen")
        lb1 = k.newlabel("lb2")
        lb2 = k.newlabel("lbj")
        e(f"s_cmp_eq_u32 s{g.s_wk}, 1")
        e(f"s_cbranch_scc1 {lb1}")
        for j in range(9):
            B = LB + 8 * j
            e(f"buffer_load_dwordx2 v[{B}:{B+1}], v{EB+2}, s[16:19], s34 offen offset:{32*j}")
        e(f"s_branch {lb2}")
        k.label(lb1)
        for j in range(9):
            B = LB + 8 * j
            e(f"buffer_load_dwordx2 v[{B}:{B+1}], v{EB+1}, s[20:23], s33 offen offset:{32*j}")
        k.label(lb2)
    g.pre_init = pre

    def init(g):
        e(f"s_waitcnt vmcnt({g.pro_dma})")
        for j in range(9):
            B = LB + 8 * j
            a = g.ACC + 4 * j
            for r in range(4):
                e(f"v_add_f32 v{a+r}, v{a+r}, v{B+4+r}")
            e(f"v_lshlrev_b32 v{B+4}, 16, v{B}")
            e(f"v_and_b32 v{B+5}, 0xffff0000, v{B}")
            e(f"v_lshlrev_b32 v{B+6}, 16, v{B+1}")
            e(f"v_and_b32 v{B+7}, 0xffff0000, v{B+1}")
            for r in range(4):
                e(f"v_add_f32 v{a+r}, v{a+r}, v{B+4+r}")

    g.body(4, 8, 32, 33, 4, acc_init=init)
    assert g.vfree + 4 <= EB
    A = g.ACC
    e("s_barrier")
    e(f"s_mul_i32 s36, s{g.s_wm}, {9 * 1024}")
    e(f"v_add_u32 v{EB}, s36, v{EB+3}")
    l1 = k.newlabel("wk0")
    e(f"s_cmp_eq_u32 s{g.s_wk}, 0")
    e(f"s_cbranch_scc1 {l1}")
    for q in range(9):
        e(f"ds_write_b128 v{EB}, v[{A+4*q}:{A+4*q+3}] offset:{1024*q}")
    e("s_waitcnt lgkmcnt(0)")
    e("s_barrier")
    e("s_endpgm")
    k.label(l1)
    e("s_barrier")
    for q in range(9):
        e(f"ds_read_b128 v[{LB+4*q}:{LB+4*q+3}], v{EB} offset:{1024*q}")
    for j in range(9):
        a = A + 4 * j
        e(f"s_waitcnt lgkmcnt({8 - j})")
        for r in range(4):
            e(f"v_add_f32 v{a+r}, v{a+r}, v{LB+4*j+r}")
        e(f"v_cvt_pk_bf16_f32 v{a}, v{a}, v{a+1}")
        e(f"v_cvt_pk_bf16_f32 v{a+1}, v{a+2}, v{a+3}")
        e(f"buffer_store_dwordx2 v[{a}:{a+1}], v{EB+2}, s[24:27], s34 offen offset:{32*j}")
    k.wgstamp(1, 4)
    k.wgstamp(3, 4)
    k.label(done)
    e("s_endpgm")
    k.maxs = 60
    k.ldsz = g.lds
    return k


def attn_body(k, lds_base, bar_mask, done):
    wbase = 0
    e = k.e
    k.srd(4, "ws", WS_Q, SZ_ACT)
    k.srd(8, "ws", WS_KM, WS_H - WS_KM)
    k.srd(12, "ws", WS_O, SZ_ACT)
    k.srd_finish()
    k.stamp(0, 1)
    e(f"s_setprio {os.environ.get('ATT_PRIO', '3')}")
    Q0, Q1 = 4, 8
    KM = [12, 16]
    K1 = [20, 24]
    VV = [28, 36]
    SS = [44, 60]
    P = 76
    O = 84
    T = 100
    vKo, vKe, vVo, vNM, vML, vQo, vBig = 108, 109, 110, 111, 112, 113, 114
    k.maxv = max(k.maxv, 116)
    k.maxs = max(k.maxs, 36)
    sK, sKE, sV, sT, sFl, sCnt, sBM = 20, 21, 22, 23, 24, 25, 26
    e(f"v_bfe_u32 v{T}, v0, 6, 3")
    e("s_nop 0")
    e(f"v_readfirstlane_b32 s16, v{T}")
    e("s_nop 3")
    e("s_lshl_b32 s17, s2, 3")
    e("s_add_u32 s16, s16, s17")
    if wbase:
        e(f"s_add_u32 s16, s16, {wbase}")
    e("s_lshr_b32 s17, s16, 6")
    e("s_and_b32 s18, s16, 63")
    e(f"v_and_b32 v{T}, 31, v0")
    e(f"v_bfe_u32 v{T+1}, v0, 5, 1")
    e(f"v_mov_b32 v{vBig}, 0x80000000")
    e("s_lshl_b32 s19, s18, 5")
    e(f"v_add_u32 v{T+2}, s19, v{T}")
    e("s_movk_i32 s19, 1152")
    e(f"v_mul_lo_u32 v{T+2}, v{T+2}, s19")
    e("s_mul_i32 s19, s17, 36")
    e(f"v_add_u32 v{vQo}, s19, v{T+2}")
    e(f"v_lshl_add_u32 v{T+2}, v{T+1}, 4, v{vQo}")
    e(f"buffer_load_dwordx4 v[{Q0}:{Q0+3}], v{T+2}, s[4:7], 0 offen")
    e(f"v_cmp_eq_u32 vcc, 0, v{T+1}")
    e("s_nop 1")
    e(f"v_cndmask_b32 v{T+3}, v{vBig}, v{vQo}, vcc")
    e(f"buffer_load_dword v{Q1}, v{T+3}, s[4:7], 0 offen offset:32")
    e(f"v_cndmask_b32 v{vML}, 0, -1, vcc")
    e(f"v_mov_b32 v{Q1+1}, 0")
    e(f"v_mov_b32 v{Q1+2}, 0")
    e(f"v_mov_b32 v{Q1+3}, 0")
    e(f"v_mov_b32 v{vNM}, 0")
    e(f"v_and_b32 v{vKo}, 63, v0")
    e(f"v_lshlrev_b32 v{vKo}, 4, v{vKo}")
    e(f"v_lshlrev_b32 v{vKe}, 2, v{T}")
    e(f"v_add_u32 v{vKe}, {WS_KE - WS_KM}, v{vKe}")
    e(f"v_min_u32 v{vVo}, 18, v{T}")
    e(f"v_lshl_add_u32 v{vVo}, v{T+1}, 5, v{vVo}")
    e(f"v_lshlrev_b32 v{vVo}, 4, v{vVo}")
    e(f"v_add_u32 v{vVo}, {WS_VT - WS_KM}, v{vVo}")
    for b in range(2):
        e(f"v_mov_b32 v{K1[b]+1}, 0x3f80")
        e(f"v_mov_b32 v{K1[b]+2}, 0")
        e(f"v_mov_b32 v{K1[b]+3}, 0")
    e(f"s_mov_b32 s{sBM}, 0x{bar_mask:08x}")
    sMode = 27
    e(f"s_mov_b32 s{sMode}, 0")

    def loadK(b):
        e(f"buffer_load_dwordx4 v[{KM[b]}:{KM[b]+3}], v{vKo}, s[8:11], s{sK} offen")
        e(f"buffer_load_dword v{K1[b]}, v{vKe}, s[8:11], s{sKE} offen")
        e(f"s_add_u32 s{sK}, s{sK}, 1024")
        e(f"s_add_u32 s{sKE}, s{sKE}, 128")

    def loadV(b):
        e(f"buffer_load_dwordx4 v[{VV[b]}:{VV[b]+3}], v{vVo}, s[8:11], s{sV} offen")
        e(f"buffer_load_dwordx4 v[{VV[b]+4}:{VV[b]+7}], v{vVo}, s[8:11], s{sV} offen offset:1024")
        e(f"s_add_u32 s{sV}, s{sV}, 2048")

    def maxtree(s):
        e(f"v_max3_f32 v{T}, v{s}, v{s+1}, v{s+2}")
        e(f"v_max3_f32 v{T+1}, v{s+3}, v{s+4}, v{s+5}")
        e(f"v_max3_f32 v{T+2}, v{s+6}, v{s+7}, v{s+8}")
        e(f"v_max3_f32 v{T+3}, v{s+9}, v{s+10}, v{s+11}")
        e(f"v_max3_f32 v{T+4}, v{s+12}, v{s+13}, v{s+14}")
        e(f"v_max3_f32 v{T}, v{T}, v{T+1}, v{s+15}")
        e(f"v_max3_f32 v{T+2}, v{T+2}, v{T+3}, v{T+4}")
        e(f"v_max_f32 v{T}, v{T}, v{T+2}")

    def rescale(s):
        e(f"v_mov_b32 v{T+1}, v{T}")
        e("s_nop 7")
        e(f"v_permlane32_swap_b32 v{T}, v{T+1}")
        e("s_nop 1")
        e(f"v_max_f32 v{T}, v{T}, v{T+1}")
        e(f"v_max_f32 v{T}, s{sFl}, v{T}")
        e(f"v_sub_f32 v{T+1}, v{vNM}, v{T}")
        e(f"v_cvt_pk_bf16_f32 v{T+1}, v{T+1}, v{T+1}")
        e(f"v_lshlrev_b32 v{T+1}, 16, v{T+1}")
        e(f"v_sub_f32 v{T+2}, v{vNM}, v{T+1}")
        e(f"v_mov_b32 v{vNM}, v{T+1}")
        e(f"v_lshrrev_b32 v{T+3}, 16, v{T+1}")
        e(f"v_and_b32 v{Q1+1}, v{T+3}, v{vML}")
        e(f"v_exp_f32 v{T+3}, -v{T+2}")
        e("s_nop 7")
        e(f"v_min_f32 v{T+3}, 1.0, v{T+3}")
        for r in range(16):
            e(f"v_sub_f32 v{s+r}, v{s+r}, v{T+2}")
        for r in range(11):
            e(f"v_mul_f32 v{O+r}, v{O+r}, v{T+3}")
        e(f"s_mov_b32 s{sT}, 0x41000000")
        e(f"s_mov_b32 s{sFl}, 0")

    restart = k.newlabel("restart")
    safel = k.newlabel("safe")
    epil = k.newlabel("epi")
    k.label(restart)
    for r in range(16):
        e(f"v_mov_b32 v{O+r}, 0")
    e(f"v_mov_b32 v{Q1+1}, 0")
    e(f"v_mov_b32 v{vNM}, 0")
    e(f"s_mov_b32 s{sT}, 0xff800000")
    e(f"s_mov_b32 s{sFl}, 0xff800000")
    e(f"s_mov_b32 s{sK}, 0")
    e(f"s_mov_b32 s{sKE}, 0")
    e(f"s_mov_b32 s{sV}, 0")
    loadK(0)
    loadK(1)
    loadV(0)
    e("s_waitcnt vmcnt(4)")
    s0 = SS[0]
    e(f"v_mfma_f32_32x32x16_bf16 v[{s0}:{s0+15}], v[{KM[0]}:{KM[0]+3}], v[{Q0}:{Q0+3}], 0")
    e(f"v_mfma_f32_32x32x16_bf16 v[{s0}:{s0+15}], v[{K1[0]}:{K1[0]+3}], v[{Q1}:{Q1+3}], v[{s0}:{s0+15}]")
    loadK(0)
    loadV(1)
    e(f"s_mov_b32 s{sCnt}, 0")
    e("s_nop 7")
    e("s_nop 7")
    k.stamp(1, 1)
    e(f"s_cmp_lg_u32 s{sMode}, 0")
    e(f"s_cbranch_scc1 {safel}")
    rares = []

    def loop_body(safe):
        nonlocal e
        e_orig = e
        abl = os.environ.get("ABL", "")
        def e(l):
            if not safe:
                if "exp" in abl and "v_exp" in l: return
                if "cvt" in abl and "v_cvt" in l: return
                if "mfma" in abl and "mfma" in l: return
                if "load" in abl and "buffer_load" in l: return
            e_orig(l)
        try:
            loop_body2(safe)
        finally:
            e = e_orig

    def loop_body2(safe):
        loop = k.newlabel("loop")
        k.label(loop)
        for u in range(2):
            cur, nxt = u, 1 - u
            s = SS[cur]
            sn = SS[nxt]
            if safe:
                maxtree(s)
                e(f"v_cmp_lt_f32 vcc, s{sT}, v{T}")
                rl = k.newlabel("rare")
                bk = k.newlabel("back")
                rares.append((rl, bk, s))
                e(f"s_cbranch_vccnz {rl}")
                k.label(bk)
            n0 = 0 if safe else 4
            for r in range(n0):
                e(f"v_exp_f32 v{s+r}, v{s+r}")
            e("s_waitcnt vmcnt(6)")
            e(f"v_mfma_f32_32x32x16_bf16 v[{sn}:{sn+15}], v[{KM[nxt]}:{KM[nxt]+3}], v[{Q0}:{Q0+3}], 0")
            for r in range(n0, n0 + 4):
                e(f"v_exp_f32 v{s+r}, v{s+r}")
            e(f"v_mfma_f32_32x32x16_bf16 v[{sn}:{sn+15}], v[{K1[nxt]}:{K1[nxt]+3}], v[{Q1}:{Q1+3}], v[{sn}:{sn+15}]")
            loadK(nxt)
            for r in range(n0 + 4, 8):
                e(f"v_exp_f32 v{s+r}, v{s+r}")
            e(f"v_exp_f32 v{s+8}, v{s+8}")
            for r in range(4):
                e(f"v_cvt_pk_bf16_f32 v{P+r}, v{s+2*r}, v{s+2*r+1}")
            e(f"v_exp_f32 v{s+9}, v{s+9}")
            e("s_waitcnt vmcnt(6)")
            v = VV[cur]
            e(f"v_mfma_f32_32x32x16_bf16 v[{O}:{O+15}], v[{v}:{v+3}], v[{P}:{P+3}], v[{O}:{O+15}]")
            for r in range(10, 16):
                e(f"v_exp_f32 v{s+r}, v{s+r}")
            for r in range(4, 8):
                e(f"v_cvt_pk_bf16_f32 v{P+r}, v{s+2*r}, v{s+2*r+1}")
            e("s_nop 1")
            e(f"v_mfma_f32_32x32x16_bf16 v[{O}:{O+15}], v[{v+4}:{v+7}], v[{P+4}:{P+7}], v[{O}:{O+15}]")
            loadV(cur)
            if not safe:
                pass
        if bar_mask and not safe:
            nb = k.newlabel("nobar")
            e(f"s_bitcmp1_b32 s{sBM}, s{sCnt}")
            e(f"s_cbranch_scc0 {nb}")
            e("s_barrier")
            k.label(nb)
        e(f"s_add_u32 s{sCnt}, s{sCnt}, 1")
        e(f"s_cmp_lt_u32 s{sCnt}, 32")
        e(f"s_cbranch_scc1 {loop}")

    CH = 25 * 1024
    sSrc = [60, 61, 62, 63]
    sInc = [64, 65, 66, 67]
    sDst = 68
    sBuf = 69
    vLK, vLE, vLV = K1[1] , K1[1] + 2, K1[1] + 3
    k.maxs = max(k.maxs, 72)
    e("s_and_b32 s19, s16, 7")
    e(f"s_lshl_b32 s{sSrc[0]}, s19, 10")
    e(f"s_add_u32 s{sSrc[0]}, s{sSrc[0]}, 1024")
    e(f"s_mov_b32 s{sInc[0]}, 8192")
    e(f"s_lshl_b32 s{sSrc[1]}, s19, 10")
    e(f"s_add_u32 s{sSrc[1]}, s{sSrc[1]}, {WS_VT - WS_KM - 1024}")
    e(f"s_mov_b32 s{sInc[1]}, 16384")
    e("s_cmp_eq_u32 s19, 0")
    e(f"s_cselect_b32 s{sSrc[1]}, {WS_KE - WS_KM + 128}, s{sSrc[1]}")
    e(f"s_cselect_b32 s{sInc[1]}, 1024, s{sInc[1]}")
    e(f"s_lshl_b32 s{sSrc[2]}, s19, 10")
    e(f"s_add_u32 s{sSrc[2]}, s{sSrc[2]}, {WS_VT - WS_KM + 7 * 1024}")
    e(f"s_mov_b32 s{sInc[2]}, 16384")
    e(f"s_mov_b32 s{sSrc[3]}, {WS_VT - WS_KM + 15 * 1024}")
    e(f"s_mov_b32 s{sInc[3]}, 16384")
    e(f"s_lshl_b32 s{sDst}, s19, 10")
    e(f"s_add_u32 s{sDst}, s{sDst}, {lds_base}")
    e(f"s_mov_b32 s{sBuf}, 0")

    def chunk_dma():
        for j in range(4):
            lb = None
            if j == 3:
                lb = k.newlabel("nd")
                e("s_cmp_lg_u32 s19, 0")
                e(f"s_cbranch_scc1 {lb}")
            e(f"s_add_u32 s{sT}, s{sDst}, s{sBuf}")
            e(f"s_add_u32 m0, s{sT}, {j * 8192}")
            e("s_nop 0")
            e(f"buffer_load_dwordx4 v{vKo}, s[8:11], s{sSrc[j]} offen lds")
            e(f"s_add_u32 s{sSrc[j]}, s{sSrc[j]}, s{sInc[j]}")
            if lb:
                k.label(lb)
        e(f"s_xor_b32 s{sBuf}, s{sBuf}, {CH}")

    chunk_dma()
    maxtree(s0)
    rescale(s0)
    e("s_waitcnt vmcnt(0)")
    e(f"v_add_u32 v{vLK}, {lds_base}, v{vKo}")
    e(f"v_subrev_u32 v{vLE}, {WS_KE - WS_KM - lds_base - 8192}, v{vKe}")
    e(f"v_subrev_u32 v{vLV}, {WS_VT - WS_KM - lds_base - 9216}, v{vVo}")
    e("s_barrier")
    chunk_dma()
    km, k1, vv = KM[0], K1[0], VV[0]

    def rd(t):
        e(f"ds_read_b128 v[{km}:{km+3}], v{vLK} offset:{1024*t}")
        e(f"ds_read_b32 v{k1}, v{vLE} offset:{128*t}")
        e(f"ds_read_b128 v[{vv}:{vv+3}], v{vLV} offset:{2048*t}")
        e(f"ds_read_b128 v[{vv+4}:{vv+7}], v{vLV} offset:{2048*t+1024}")

    rd(0)
    e(f"s_mov_b32 s{sCnt}, 0")
    floop = k.newlabel("floop")
    k.label(floop)
    e_orig = e
    abl = os.environ.get("ABL2", "")
    def e(l):
        if "exp" in abl and "v_exp" in l: return
        if "cvt" in abl and "v_cvt" in l: return
        if "qk" in abl and "mfma" in l and f"v[{O}:" not in l: return
        if "pv" in abl and "mfma" in l and f"v[{O}:" in l: return
        if "lds" in abl and ("ds_read" in l or "lgkmcnt" in l): return
        e_orig(l)
    for t in range(8):
        cur, nxt = t & 1, 1 - (t & 1)
        s = SS[cur]
        sn = SS[nxt]
        for r in range(4):
            e(f"v_exp_f32 v{s+r}, v{s+r}")
        e("s_waitcnt lgkmcnt(3)")
        e(f"v_mfma_f32_32x32x16_bf16 v[{sn}:{sn+15}], v[{km}:{km+3}], v[{Q0}:{Q0+3}], 0")
        for r in range(4, 8):
            e(f"v_exp_f32 v{s+r}, v{s+r}")
        e("s_waitcnt lgkmcnt(2)")
        e(f"v_mfma_f32_32x32x16_bf16 v[{sn}:{sn+15}], v[{k1}:{k1+3}], v[{Q1}:{Q1+3}], v[{sn}:{sn+15}]")
        e(f"v_exp_f32 v{s+8}, v{s+8}")
        for r in range(4):
            e(f"v_cvt_pk_bf16_f32 v{P+r}, v{s+2*r}, v{s+2*r+1}")
        e(f"v_exp_f32 v{s+9}, v{s+9}")
        e("s_waitcnt lgkmcnt(1)")
        e(f"v_mfma_f32_32x32x16_bf16 v[{O}:{O+15}], v[{vv}:{vv+3}], v[{P}:{P+3}], v[{O}:{O+15}]")
        for r in range(10, 16):
            e(f"v_exp_f32 v{s+r}, v{s+r}")
        for r in range(4, 8):
            e(f"v_cvt_pk_bf16_f32 v{P+r}, v{s+2*r}, v{s+2*r+1}")
        e("s_waitcnt lgkmcnt(0)")
        e("s_nop 0")
        e(f"v_mfma_f32_32x32x16_bf16 v[{O}:{O+15}], v[{vv+4}:{vv+7}], v[{P+4}:{P+7}], v[{O}:{O+15}]")
        if t < 7:
            rd(t + 1)
        if t & 1:
            if t == 7:
                e("s_waitcnt vmcnt(0)")
                e("s_barrier")
                e(f"v_xor_b32 v{vLK}, {CH}, v{vLK}") if False else None
                flip = k.newlabel("fl")
                e(f"s_sub_u32 s{sT}, {CH}, s{sBuf}")
                e(f"s_lshl_b32 s{sT}, s{sT}, 1")
                e(f"s_sub_u32 s{sT}, s{sT}, {CH}")
                for vr_ in (vLK, vLE, vLV):
                    e(f"v_add_u32 v{vr_}, s{sT}, v{vr_}")
                chunk_dma()
                rd(0)
            else:
                nb = k.newlabel("nobar")
                e(f"s_bitcmp1_b32 s{sBM}, s{sCnt}")
                e(f"s_cbranch_scc0 {nb}")
                e("s_barrier")
                k.label(nb)
            e(f"s_add_u32 s{sCnt}, s{sCnt}, 1")
    e = e_orig
    e(f"s_cmp_lt_u32 s{sCnt}, 32")
    e(f"s_cbranch_scc1 {floop}")
    if abl:
        e(f"v_mov_b32 v{O+10}, 1.0")
    e("s_waitcnt vmcnt(0) lgkmcnt(0)")
    for b_ in range(2):
        e(f"v_mov_b32 v{K1[b_]+1}, 0x3f80")
        e(f"v_mov_b32 v{K1[b_]+2}, 0")
        e(f"v_mov_b32 v{K1[b_]+3}, 0")
    k.stamp(2, 1)
    e("s_nop 15")
    e("s_nop 3")
    e(f"v_mov_b32 v{T}, v{O+10}")
    e(f"v_mov_b32 v{T+1}, v{O+10}")
    e("s_nop 1")
    e(f"v_permlane32_swap_b32 v{T}, v{T+1}")
    e(f"s_mov_b32 s{sT}, 0x5f800000")
    e("s_nop 1")
    e(f"v_cmp_nlt_f32 vcc, v{T}, s{sT}" if False else f"v_cmp_ngt_f32 vcc, s{sT}, v{T}")
    e(f"s_cbranch_vccz {epil}")
    e("s_waitcnt vmcnt(0)")
    e(f"s_mov_b32 s{sMode}, 1")
    e(f"s_branch {restart}")
    k.label(safel)
    loop_body(True)
    e("s_nop 15")
    e("s_nop 3")
    e(f"v_mov_b32 v{T}, v{O+10}")
    e(f"v_mov_b32 v{T+1}, v{O+10}")
    e("s_nop 1")
    e(f"v_permlane32_swap_b32 v{T}, v{T+1}")
    e("s_nop 1")
    k.label(epil)
    e(f"v_rcp_f32 v{T}, v{T}")
    e("s_nop 0")
    for r in range(10):
        e(f"v_mul_f32 v{O+r}, v{O+r}, v{T}")
    for r in range(5):
        e(f"v_cvt_pk_bf16_f32 v{O+r}, v{O+2*r}, v{O+2*r+1}")
    e(f"v_bfe_u32 v{T+1}, v0, 5, 1")
    e(f"v_lshl_add_u32 v{T+2}, v{T+1}, 3, v{vQo}")
    e(f"buffer_store_dwordx2 v[{O}:{O+1}], v{T+2}, s[12:15], 0 offen")
    e(f"buffer_store_dwordx2 v[{O+2}:{O+3}], v{T+2}, s[12:15], 0 offen offset:16")
    e(f"v_cmp_eq_u32 vcc, 0, v{T+1}")
    e("s_nop 1")
    e(f"v_cndmask_b32 v{T+3}, v{vBig}, v{vQo}, vcc")
    e(f"buffer_store_dword v{O+4}, v{T+3}, s[12:15], 0 offen offset:32")
    e(f"s_branch {done}")
    for (rl, bk, s) in rares:
        k.label(rl)
        rescale(s)
        e(f"s_branch {bk}")


def split_roles(k, attl):
    e = k.e
    e("v_lshrrev_b32 v1, 9, v0")
    e("s_nop 0")
    e("v_readfirstlane_b32 s3, v1")
    e("s_nop 3")
    e("s_cmp_lg_u32 s3, 0")
    e(f"s_cbranch_scc1 {attl}")


def mask_of(its):
    m = 0
    for i in its:
        m |= 1 << i
    return m


HEADER = open("parallel_sum__grouped_kv_mqa__mixer_channel_mlp__prompt.s.ref").read().split("; Override launch")[0]


def emit(kernels, launches):
    out = [HEADER.rstrip()]
    for (kn, grid, block, lds) in launches:
        out.append(f"; @launch kernel={kn} grid=({grid},1,1) block=({block},1,1) lds={lds}")
    out.append('.amdgcn_target "amdgcn-amd-amdhsa--gfx950"')
    out.append(".text")
    for k in kernels:
        out.append(f".globl {k.name}")
        out.append(".p2align 8")
        out.append(f".type {k.name},@function")
        out.append(f"{k.name}:")
        out.append(k.text())
    out.append('.section .rodata,"a"')
    for k in kernels:
        nv = k.maxv
        acc = -(-nv // 4) * 4
        out.append(".p2align 6")
        out.append(f".amdhsa_kernel {k.name}")
        out.append(f"  .amdhsa_next_free_vgpr {nv}")
        out.append(f"  .amdhsa_next_free_sgpr {100 if getattr(k,'stamped',False) else max(k.maxs, 16)}")
        out.append(f"  .amdhsa_accum_offset {acc}")
        out.append("  .amdhsa_group_segment_fixed_size 0")
        out.append("  .amdhsa_kernarg_size 104")
        out.append("  .amdhsa_user_sgpr_count 2")
        out.append("  .amdhsa_user_sgpr_kernarg_segment_ptr 1")
        out.append("  .amdhsa_system_sgpr_workgroup_id_x 1")
        out.append(".end_amdhsa_kernel")
    return "\n".join(out) + "\n"


def main():
    ln = gen_ln("ln_kernel")
    g1 = gen_gemm1("gemm1_kernel")
    g2 = gen_gemm2("gemm2_kernel")
    fin = gen_final("final_kernel")
    kernels = [ln, g1, g2, fin]
    launches = [("ln_kernel", 256, 256, 0),
                ("gemm1_kernel", 256, 768, g1.ldsz),
                ("gemm2_kernel", 256, 1024, g2.ldsz),
                ("final_kernel", 256, 256, fin.ldsz)]
    txt = emit(kernels, launches)
    path = sys.argv[1] if len(sys.argv) > 1 else "parallel_sum__grouped_kv_mqa__mixer_channel_mlp__prompt.s"
    open(path, "w").write(txt)
    for k in kernels:
        print(k.name, "vgpr", k.maxv, "lds", getattr(k, "ldsz", 0), "lines", len(k.L))


if __name__ == "__main__":
    main()

    open("gen_consts.py", "w").write(
        "".join(f"{n} = {globals()[n]!r}\n" for n in ["WS_XN", "WS_Y", "WS_Q", "WS_O", "WS_WKV", "WS_KM", "WS_KE", "WS_VT", "WS_H", "WS_P", "QSCALE"]))
```

```python
import math, struct, sys, os

S_TOK = 2048
D = 576
F = 4608
H = 32
DH = 18

SZ_ACT = S_TOK * D * 2
WS_XN = 0
WS_Y = WS_XN + SZ_ACT
WS_Q = WS_Y + SZ_ACT
WS_O = WS_Q + SZ_ACT
WS_WKV = WS_O + SZ_ACT
WS_KM = WS_WKV + 576 * 64 * 2
WS_KE = WS_KM + 2048 * 32
WS_VT = WS_KE + 2048 * 4
WS_H = WS_VT + 128 * 1024 + 8192
WS_P = WS_H + S_TOK * F * 2
WS_AS = WS_P + 4 * S_TOK * D * 4
WS_END = WS_AS + 2048 * 3072
WS_BYTES = 268435456
WS_DBG = 60 << 20

KA = dict(x=0, wq=8, wk=16, wv=24, wo=32, bx=40, w1=48, b1=56, w2=64, b2=72, out=80, dbg=88, ws=96)
SZ = dict(x=SZ_ACT, wq=D * D * 2, wk=D * 18 * 2, wv=D * 18 * 2, wo=D * D * 2, w1=D * F * 2, b1=F * 2,
          w2=F * D * 2, b2=D * 2, out=SZ_ACT, ws=WS_BYTES)


STF = os.environ.get('STF', ' sc1')


ST2 = os.environ.get('ST2', '')


def f32bits(x):
    return struct.unpack('<I', struct.pack('<f', x))[0]


def magic(div, maxval):
    for sh in range(8, 31):
        M = -(-(1 << sh) // div)
        if M * maxval >= (1 << 32):
            break
        if all(((c * M) >> sh) == c // div for c in range(maxval)):
            return M, sh
    raise ValueError("no magic")


class Kern:
    def __init__(self, name):
        self.name = name
        self.L = []
        self.maxv = 0
        self.maxs = 0
        self.lbl = 0

    def e(self, s):
        self.L.append("  " + s)

    def c(self, s):
        self.L.append("  ; " + s)

    def label(self, l):
        self.L.append(l + ":")

    def newlabel(self, p="L"):
        self.lbl += 1
        return f"{self.name}_{p}{self.lbl}"

    def srd(self, sbase, arg, off=0, size=None):
        self.e(f"s_load_dwordx2 s[{sbase}:{sbase+1}], s[0:1], {KA[arg]}")
        self._pending = getattr(self, "_pending", [])
        self._pending.append((sbase, arg, off, size))

    def srd_finish(self):
        self.e("s_waitcnt lgkmcnt(0)")
        for sbase, arg, off, size in self._pending:
            if off:
                self.e(f"s_add_u32 s{sbase}, s{sbase}, {off}")
                self.e(f"s_addc_u32 s{sbase+1}, s{sbase+1}, 0")
            sz = (SZ[arg] - off) if size is None else size
            self.e(f"s_mov_b32 s{sbase+2}, {sz}")
            self.e(f"s_mov_b32 s{sbase+3}, 0x00020000")
        self._pending = []

    def stamp(self, idx, role):
        if not os.environ.get("STAMP"):
            return
        e = self.e
        e("s_memtime s[90:91]")
        e("s_load_dwordx2 s[92:93], s[0:1], 88")
        e("s_waitcnt lgkmcnt(0)")
        e("s_mov_b32 s94, 256")
        e("s_mov_b32 s95, 0x20000")
        R0, R1 = (126, 127) if self.name.startswith("gemm") else (250, 251)
        e(f"v_and_b32 v{R1}, 511, v0")
        e(f"v_cmp_eq_u32 vcc, 0, v{R1}")
        e(f"v_mov_b32 v{R1}, {(role*16+idx)*4}")
        e(f"v_mov_b32 v{R0}, 0x80000000")
        e("s_nop 1")
        e(f"v_cndmask_b32 v{R1}, v{R0}, v{R1}, vcc")
        e(f"v_mov_b32 v{R0}, s90")
        l = self.newlabel("st")
        e("s_cmp_lg_u32 s2, 3")
        e(f"s_cbranch_scc1 {l}")
        e(f"buffer_store_dword v{R0}, v{R1}, s[92:95], 0 offen")
        self.label(l)
        self.maxv = max(self.maxv, R1 + 1)
        self.stamped = True

    def wgstamp(self, slot, kidx):
        if not os.environ.get("WGSTAMP"):
            return
        e = self.e
        R0, R1 = (126, 127) if self.name.startswith("gemm") else (250, 251)
        e("s_memrealtime s[90:91]" if (slot < 2 or kidx == 2) and kidx != 1 else "s_memtime s[90:91]")
        e("s_load_dwordx2 s[92:93], s[0:1], 96")
        e("s_waitcnt lgkmcnt(0)")
        e(f"s_add_u32 s92, s92, {WS_DBG + kidx * 65536}")
        e("s_addc_u32 s93, s93, 0")
        e("s_mov_b32 s94, 65536")
        e("s_mov_b32 s95, 0x20000")
        e(f"v_and_b32 v{R1}, 511, v0")
        e(f"v_cmp_eq_u32 vcc, 0, v{R1}")
        e(f"s_lshl_b32 s96, s2, 4")
        e(f"s_add_u32 s96, s96, {slot*4}")
        e(f"v_mov_b32 v{R1}, s96")
        e(f"v_mov_b32 v{R0}, 0x80000000")
        e("s_nop 1")
        e(f"v_cndmask_b32 v{R1}, v{R0}, v{R1}, vcc")
        e(f"v_mov_b32 v{R0}, s90")
        e(f"buffer_store_dword v{R0}, v{R1}, s[92:95], 0 offen")
        self.maxv = max(self.maxv, R1 + 1)
        self.stamped = True

    def text(self):
        return "\n".join(self.L)


def vr(a, n=1):
    return f"v{a}" if n == 1 else f"v[{a}:{a+n-1}]"


def sr(a, n=1):
    return f"s{a}" if n == 1 else f"s[{a}:{a+n-1}]"


def gen_ln(name):
    k = Kern(name)
    e = k.e
    done = k.newlabel("done")
    e("s_cmp_ge_u32 s2, 256")
    e(f"s_cbranch_scc1 {done}")
    k.srd(4, "x")
    k.srd(8, "ws", WS_XN, SZ_ACT)
    k.srd(12, "ws", WS_Y, SZ_ACT)
    k.srd(16, "wk")
    k.srd(20, "wv")
    k.srd(24, "ws", WS_WKV, 576 * 64 * 2)
    k.srd(32, "w1")
    k.srd(36, "wq")
    k.srd_finish()
    e("v_lshrrev_b32 v1, 5, v0")
    e("s_lshl_b32 s3, s2, 3")
    e("v_add_u32 v1, s3, v1")
    e("s_movk_i32 s28, 1152")
    e("v_mul_lo_u32 v1, v1, s28")
    e("v_and_b32 v2, 31, v0")
    e("v_lshl_add_u32 v1, v2, 2, v1")
    X = 4
    for i in range(9):
        e(f"buffer_load_dword v{X+i}, v1, s[4:7], 0 offen offset:{128*i}")
    skip = k.newlabel("skipw")
    e("s_cmp_ge_u32 s2, 144")
    e(f"s_cbranch_scc1 {skip}")
    e("v_lshrrev_b32 v60, 6, v0")
    e("s_lshl_b32 s3, s2, 2")
    e("v_add_u32 v60, s3, v60")
    e("v_and_b32 v61, 63, v0")
    e("v_mul_u32_u24 v62, 36, v60")
    e("v_lshl_add_u32 v63, v61, 1, v62")
    e("v_mov_b32 v58, 0x80000000")
    e("v_cmp_gt_u32 vcc, 18, v61")
    e("s_nop 1")
    e("v_cndmask_b32 v63, v58, v63, vcc")
    e("v_subrev_u32 v59, 32, v61")
    e("v_lshl_add_u32 v57, v59, 1, v62")
    e("v_cmp_gt_u32 vcc, 18, v59")
    e("s_nop 1")
    e("v_cndmask_b32 v57, v58, v57, vcc")
    e("buffer_load_ushort v56, v63, s[16:19], 0 offen")
    e("buffer_load_ushort v55, v57, s[20:23], 0 offen")
    e("v_lshlrev_b32 v60, 7, v60")
    e("v_lshl_add_u32 v60, v61, 1, v60")
    e("s_waitcnt vmcnt(0)")
    e("v_or_b32 v56, v56, v55")
    e("buffer_store_short v56, v60, s[24:27], 0 offen")
    k.label(skip)
    e("s_waitcnt vmcnt(0)")
    if not os.environ.get("NOPF"):
        e("v_lshlrev_b32 v74, 4, v0")
        e("s_lshl_b32 s3, s2, 12")
        for i in range(6):
            e(f"s_add_u32 s29, s3, {i * 256 * 4096}")
            e(f"buffer_load_dwordx4 v[76:79], v74, s[32:35], s29 offen")
        e(f"buffer_load_dwordx4 v[76:79], v74, s[36:39], s3 offen")
    E = 16
    T = 40

    def unpack(src0):
        for i in range(9):
            e(f"v_lshlrev_b32 v{E+2*i}, 16, v{src0+i}")
            e(f"v_and_b32 v{E+2*i+1}, 0xffff0000, v{src0+i}")

    def reduce32(r, t):
        for mod in ("quad_perm:[1,0,3,2]", "quad_perm:[2,3,0,1]", "row_half_mirror", "row_mirror"):
            e("s_nop 1")
            e(f"v_add_f32_dpp v{t}, v{r}, v{r} {mod} row_mask:0xf bank_mask:0xf")
            e(f"v_mov_b32 v{r}, v{t}")
        e(f"ds_swizzle_b32 v{t}, v{r} offset:0x401F")
        e("s_waitcnt lgkmcnt(0)")
        e(f"v_add_f32 v{r}, v{r}, v{t}")

    def bf16r(r):
        e(f"v_cvt_pk_bf16_f32 v{r}, v{r}, v{r}")
        e(f"v_lshlrev_b32 v{r}, 16, v{r}")

    def layernorm(dst):
        e(f"v_add_f32 v{T}, v{E}, v{E+1}")
        for i in range(2, 18):
            e(f"v_add_f32 v{T}, v{T}, v{E+i}")
        reduce32(T, T + 1)
        e(f"v_mul_f32 v{T}, 0x{f32bits(1.0/576):08x}, v{T}")
        e(f"v_sub_f32 v{T+2}, v{E}, v{T}")
        e(f"v_mul_f32 v{T+3}, v{T+2}, v{T+2}")
        for i in range(1, 18):
            e(f"v_sub_f32 v{T+2}, v{E+i}, v{T}")
            e(f"v_fmac_f32 v{T+3}, v{T+2}, v{T+2}")
        reduce32(T + 3, T + 1)
        e(f"v_mul_f32 v{T+3}, 0x{f32bits(1.0/576):08x}, v{T+3}")
        bf16r(T)
        bf16r(T + 3)
        e(f"v_add_f32 v{T+3}, 0x{f32bits(1e-5):08x}, v{T+3}")
        bf16r(T + 3)
        e(f"v_sqrt_f32 v{T+3}, v{T+3}")
        e("s_nop 0")
        bf16r(T + 3)
        e(f"v_rcp_f32 v{T+3}, v{T+3}")
        for i in range(9):
            e(f"v_sub_f32 v{T+4}, v{E+2*i}, v{T}")
            e(f"v_sub_f32 v{T+5}, v{E+2*i+1}, v{T}")
            e(f"v_cvt_pk_bf16_f32 v{T+4}, v{T+4}, v{T+5}")
            e(f"v_and_b32 v{T+5}, 0xffff0000, v{T+4}")
            e(f"v_lshlrev_b32 v{T+4}, 16, v{T+4}")
            e(f"v_mul_f32 v{T+4}, v{T+4}, v{T+3}")
            e(f"v_mul_f32 v{T+5}, v{T+5}, v{T+3}")
            e(f"v_cvt_pk_bf16_f32 v{dst+i}, v{T+4}, v{T+5}")

    unpack(X)
    layernorm(X)
    for i in range(9):
        e(f"buffer_store_dword v{X+i}, v1, s[8:11], 0 offen offset:{128*i}{ST2}")
    unpack(X)
    Y = 64
    layernorm(Y)
    for i in range(9):
        e(f"buffer_store_dword v{Y+i}, v1, s[12:15], 0 offen offset:{128*i}{ST2}")
    k.label(done)
    e("s_endpgm")
    k.maxv = 80
    k.maxs = 40
    return k


class Gemm:
    def __init__(self, k, cfg):
        self.k = k
        self.__dict__.update(cfg)
        self.TM = self.wm * self.mt * 16
        self.RS = self.nt * 32
        self.gap = cfg.get("gap", 128)
        self.CGv = 8 * self.RS // 16
        self.CG = self.CGv + self.gap // 16
        self.xbytes = self.TM * 128
        nch = 8 * self.CG
        self.NWV = self.wm * self.wk
        self.nWtot = -(-nch // 64)
        self.nWd = -(-self.nWtot // self.NWV)
        self.wbytes = self.nWtot * 1024
        self.stage_bytes = self.xbytes + self.wbytes
        self.nXd = self.xbytes // 1024 // self.NWV
        assert self.nXd % 2 == 0 or self.nXd == 1
        self.lb = cfg.get('lds_base', 0)
        self.lds = self.lb + self.nbuf * self.stage_bytes
        assert self.lds <= 163840

    def body(self, sX, sW, s_xoff, s_woff, vbase, acc_init=None):
        k = self.k
        e = k.e
        mt, nt, wm, wk, NB = self.mt, self.nt, self.wm, self.wk, self.nbuf
        v = vbase
        self.ACC = ACC = v; v += 4 * mt * nt
        nxb = 2 if wk == 1 else 1
        XF = [v + 4 * mt * i for i in range(nxb)]; v += 4 * mt * nxb
        NW = cfg_nw = self.__dict__.get('nw', 4)
        WF = [v + 4 * i for i in range(NW)]; v += 4 * NW
        vXa = [[v + 2 * b, v + 2 * b + 1] for b in range(NB)]; v += 2 * NB
        vWa = [v + b for b in range(NB)]; v += NB
        vXg = [v, v + 1]; v += 2
        vWg = [v + i for i in range(self.nWd)]; v += self.nWd
        vt = [v, v + 1, v + 2, v + 3]; v += 4
        self.vfree = v - 4
        self.vt = vt
        k.maxv = max(k.maxv, v)
        SW, SWM, SWK, SXB, SLX, SLW, ST = 40, 41, 42, 43, 44, 45, 46
        self.s_wave, self.s_wm, self.s_wk = SW, SWM, SWK
        k.stamp(0, 0)
        e(f"v_lshrrev_b32 v{vt[0]}, 6, v0")
        e("s_nop 0")
        e(f"v_readfirstlane_b32 s{SW}, v{vt[0]}")
        e(f"v_and_b32 v{vt[1]}, 63, v0")
        lane = vt[1]
        e("s_nop 2")
        if wk == 1:
            e(f"s_mov_b32 s{SWM}, s{SW}")
            e(f"s_mov_b32 s{SWK}, 0")
        else:
            assert wk == 2 and wm in (2, 4)
            e(f"s_and_b32 s{SWM}, s{SW}, {wm - 1}")
            e(f"s_lshr_b32 s{SWK}, s{SW}, {1 if wm == 2 else 2}")
        XB = self.__dict__.get("xblk", 0)
        e(f"v_lshrrev_b32 v{vt[0]}, 3, v{lane}")
        if XB:
            e(f"v_lshlrev_b32 v{vt[0]}, 4, v{vt[0]}")
        else:
            e(f"s_mov_b32 s{ST}, {self.XS}")
            e(f"v_mul_lo_u32 v{vt[0]}, v{vt[0]}, s{ST}")
        e(f"v_lshrrev_b32 v{vt[2]}, 4, v{lane}")
        e(f"v_and_b32 v{vt[3]}, 7, v{lane}")
        e(f"v_xor_b32 v{vt[2]}, v{vt[2]}, v{vt[3]}")
        if self.nXd == 1:
            e(f"s_and_b32 s{ST}, s{SW}, 1")
            e(f"s_lshl_b32 s{ST}, s{ST}, 2")
            e(f"v_xor_b32 v{vt[2]}, s{ST}, v{vt[2]}")
        e(f"v_lshl_add_u32 v{vXg[0]}, v{vt[2]}, {8 if XB else 4}, v{vt[0]}")
        e(f"v_xor_b32 v{vt[2]}, 4, v{vt[2]}")
        e(f"v_lshl_add_u32 v{vXg[1]}, v{vt[2]}, {8 if XB else 4}, v{vt[0]}")
        if XB:
            e(f"v_lshlrev_b32 v{vXg[0]}, 4, v{lane}")
            e(f"v_add_u32 v{vXg[1]}, 1024, v{vXg[0]}")
        rows_pw = self.nXd * 8
        e(f"s_mul_i32 s{SXB}, s{SW}, {(rows_pw // 16 * XB) if XB else (rows_pw * self.XS)}")
        e(f"s_add_u32 s{SXB}, s{SXB}, s{s_xoff}")
        e(f"s_mul_i32 s{SLX}, s{SW}, {self.nXd * 1024}")
        e(f"s_lshl_b32 s{SLW}, s{SW}, 10")
        e(f"s_add_u32 s{SLW}, s{SLW}, {self.xbytes}")
        nch_max = self.nWd * self.NWV * 64
        M1, sh1 = magic(self.CG, nch_max)
        M2, sh2 = magic(self.RS // 16, self.CG)
        for i in range(self.nWd):
            e(f"s_lshl_b32 s{ST}, s{SW}, 6")
            e(f"s_add_u32 s{ST}, s{ST}, {i * 64 * self.NWV}")
            e(f"v_add_u32 v{vt[0]}, s{ST}, v{lane}")
            e(f"s_mov_b32 s{ST}, {M1}")
            e(f"v_mul_lo_u32 v{vt[2]}, v{vt[0]}, s{ST}")
            e(f"v_lshrrev_b32 v{vt[2]}, {sh1}, v{vt[2]}")
            e(f"v_mul_u32_u24 v{vt[3]}, {self.CG}, v{vt[2]}")
            e(f"v_sub_u32 v{vt[0]}, v{vt[0]}, v{vt[3]}")
            e(f"v_mul_u32_u24 v{vt[3]}, {M2}, v{vt[0]}")
            e(f"v_lshrrev_b32 v{vt[3]}, {sh2}, v{vt[3]}")
            g = vWg[i]
            e(f"v_mul_u32_u24 v{g}, {self.RS // 16}, v{vt[3]}")
            e(f"v_sub_u32 v{g}, v{vt[0]}, v{g}")
            e(f"v_lshlrev_b32 v{g}, 4, v{g}")
            e(f"v_lshl_add_u32 v{vt[3]}, v{vt[2]}, 3, v{vt[3]}")
            e(f"s_mov_b32 s{ST}, {self.WSb}")
            e(f"v_mul_lo_u32 v{vt[3]}, v{vt[3]}, s{ST}")
            e(f"v_add_u32 v{g}, v{g}, v{vt[3]}")
            e(f"v_cmp_gt_u32 vcc, {self.CGv}, v{vt[0]}")
            e(f"v_cmp_gt_u32 s[48:49], 8, v{vt[2]}")
            e("s_nop 1")
            e("s_and_b64 vcc, vcc, s[48:49]")
            e(f"v_mov_b32 v{vt[3]}, 0x80000000")
            e("s_nop 1")
            e(f"v_cndmask_b32 v{g}, v{vt[3]}, v{g}, vcc")

        def dma_list(st):
            buf = self.lb + (st % NB) * self.stage_bytes
            out = []
            for i in range(self.nXd):
                out.append([f"s_add_u32 m0, s{SLX}, {buf + i * 1024}",
                            f"s_add_u32 s{ST}, s{SXB}, {((i // 2) * XB + st * 2048) if XB else (i * 8 * self.XS + st * 128)}",
                            f"buffer_load_dwordx4 v{vXg[i & 1]}, s[{sX}:{sX+3}], s{ST} offen lds"])
            for i in range(self.nWd):
                g = [f"s_add_u32 m0, s{SLW}, {buf + i * self.NWV * 1024}",
                     f"s_add_u32 s{ST}, s{s_woff}, {st * 64 * self.WSb}",
                     f"buffer_load_dwordx4 v{vWg[i]}, s[{sW}:{sW+3}], s{ST} offen lds"]
                nval = self.nWtot - i * self.NWV
                if nval < self.NWV:
                    lb = k.newlabel("wsk")
                    g = [f"s_cmp_ge_u32 s{SW}, {nval}", f"s_cbranch_scc1 {lb}"] + g + [f"{lb}:"]
                out.append(g)
            return out

        nD = self.nXd + self.nWtot // self.NWV
        self.pro_dma = min(NB - 1, self.nst) * nD
        if getattr(self, "pre_init", None):
            self.pre_init(self)
        for st in range(min(NB - 1, self.nst)):
            for g in dma_list(st):
                for l in g:
                    e(l)
        e(f"v_and_b32 v{vt[0]}, 15, v{lane}")
        e(f"v_lshrrev_b32 v{vt[2]}, 4, v{lane}")
        e(f"v_lshrrev_b32 v{vt[3]}, 1, v{vt[0]}")
        e(f"v_xor_b32 v{vt[3]}, v{vt[3]}, v{vt[2]}")
        if XB:
            e(f"v_lshlrev_b32 v{vt[0]}, 4, v{vt[0]}")
            e(f"v_lshl_add_u32 v{vXa[0][0]}, v{vt[2]}, 8, v{vt[0]}")
        else:
            e(f"v_lshlrev_b32 v{vt[0]}, 7, v{vt[0]}")
            e(f"v_lshl_add_u32 v{vXa[0][0]}, v{vt[3]}, 4, v{vt[0]}")
        e(f"s_mul_i32 s{ST}, s{SWM}, {mt * 16 * 128}")
        e(f"v_add_u32 v{vXa[0][0]}, s{ST}, v{vXa[0][0]}")
        if wk == 2:
            e(f"s_lshl_b32 s{ST}, s{SWK}, {10 if XB else 6}")
            e(f"v_xor_b32 v{vXa[0][0]}, s{ST}, v{vXa[0][0]}")
        e(f"v_xor_b32 v{vXa[0][1]}, {1024 if XB else 64}, v{vXa[0][0]}")
        e(f"v_bfe_u32 v{vt[0]}, v{lane}, 2, 2")
        e(f"v_lshl_add_u32 v{vt[0]}, v{vt[2]}, 3, v{vt[0]}")
        e(f"v_mul_u32_u24 v{vt[0]}, {self.RS}, v{vt[0]}")
        e(f"v_mul_u32_u24 v{vt[3]}, {self.gap}, v{vt[2]}")
        e(f"v_add_u32 v{vt[0]}, v{vt[0]}, v{vt[3]}")
        e(f"v_and_b32 v{vt[3]}, 3, v{lane}")
        e(f"v_lshl_add_u32 v{vWa[0]}, v{vt[3]}, 3, v{vt[0]}")
        KSW = 32 * self.RS + 4 * self.gap
        if wk == 2:
            e(f"s_mul_i32 s{ST}, s{SWK}, {KSW}")
            e(f"s_add_u32 s{ST}, s{ST}, {self.xbytes}")
        else:
            e(f"s_mov_b32 s{ST}, {self.xbytes}")
        e(f"v_add_u32 v{vWa[0]}, s{ST}, v{vWa[0]}")
        if self.lb:
            e(f"v_add_u32 v{vXa[0][0]}, {self.lb}, v{vXa[0][0]}")
            e(f"v_add_u32 v{vXa[0][1]}, {self.lb}, v{vXa[0][1]}")
            e(f"v_add_u32 v{vWa[0]}, {self.lb}, v{vWa[0]}")
        for b in range(1, NB):
            e(f"v_add_u32 v{vXa[b][0]}, {b * self.stage_bytes}, v{vXa[0][0]}")
            e(f"v_add_u32 v{vXa[b][1]}, {b * self.stage_bytes}, v{vXa[0][1]}")
            e(f"v_add_u32 v{vWa[b]}, {b * self.stage_bytes}, v{vWa[0]}")
        if acc_init is None:
            for r in range(4 * mt * nt):
                e(f"v_mov_b32 v{ACC + r}, 0")
        else:
            acc_init(self)
        extra_vm = getattr(self, "extra_vm", 0)
        fifo = []

        def issue(idn, line):
            e(line)
            fifo.append(idn)

        def need(ids):
            pos = max((fifo.index(i) for i in ids if i in fifo), default=-1)
            if pos >= 0:
                n = len(fifo) - 1 - pos
                e(f"s_waitcnt lgkmcnt({min(n, 15)})")
                del fifo[:pos + 1]

        PF = NW - 1
        nks = 2 if wk == 1 else 1
        nsteps = nks * nt
        for st in range(self.nst):
            aX = vXa[st % NB]
            aW = vWa[st % NB]
            inflight = min(NB - 2, self.nst - 1 - st)
            e(f"s_waitcnt vmcnt({min(63, inflight * nD)})")
            e("s_barrier")
            if st < 13:
                k.stamp(1 + st, 0)
            dmas = dma_list(st + NB - 1) if st + NB - 1 < self.nst else []
            if os.environ.get("G_NODMA"):
                dmas = []

            def rdX(ks):
                for i in range(mt):
                    issue(("X", ks, i), f"ds_read_b128 v[{XF[ks]+4*i}:{XF[ks]+4*i+3}], v{aX[ks]} offset:{2048*i}")

            def rdW(t):
                ks, j = divmod(t, nt)
                w = WF[t % NW]
                o = ks * KSW + 32 * j
                issue(("W", t, 0), f"ds_read_b64_tr_b16 v[{w}:{w+1}], v{aW} offset:{o}")
                issue(("W", t, 1), f"ds_read_b64_tr_b16 v[{w+2}:{w+3}], v{aW} offset:{o + 4*self.RS}")

            rdW(0)
            rdX(0)
            for t in range(1, min(PF, nsteps)):
                rdW(t)
            per = -(-len(dmas) // nsteps)
            for t in range(nsteps):
                ks, j = divmod(t, nt)
                if t + PF < nsteps:
                    rdW(t + PF)
                if nks == 2 and t == min(2, nt - 1):
                    rdX(1)
                for _ in range(per):
                    if dmas:
                        for l in dmas.pop(0):
                            e(l)
                ids = [("W", t, 0), ("W", t, 1)]
                if j == 0:
                    ids += [("X", ks, i) for i in range(mt)]
                need(ids)
                w = WF[t % NW]
                for i in range(mt if not os.environ.get("G_NOMFMA") else 0):
                    a = ACC + 4 * (i * nt + j)
                    e(f"v_mfma_f32_16x16x32_bf16 v[{a}:{a+3}], v[{w}:{w+3}], v[{XF[ks]+4*i}:{XF[ks]+4*i+3}], v[{a}:{a+3}]")
            assert not dmas
            assert not fifo
        e("s_nop 7")
        e("s_nop 7")
        k.stamp(14, 0)


GELU_C0 = -2.0 * math.log2(math.e) * math.sqrt(2.0 / math.pi)
GELU_C1 = GELU_C0 * 0.044715
QSCALE = math.log2(math.e) / math.sqrt(18.0)


def lane_consts(k, g, v_tok, v_g):
    k.e(f"v_and_b32 v{v_tok}, 15, v0")
    k.e(f"v_bfe_u32 v{v_g}, v0, 4, 2")


def qkv_body(k, lds_base, done):
    e = k.e
    kvl = k.newlabel("kv")
    e("v_subrev_u32 v0, 512, v0")
    pfl = k.newlabel("pf")
    e("s_cmp_ge_u32 s2, 160")
    e(f"s_cbranch_scc1 {pfl}")
    k.srd(4, "ws", WS_XN, SZ_ACT)
    k.srd(8, "wq")
    k.srd(12, "ws", WS_Q, SZ_ACT)
    k.srd(16, "ws", WS_WKV, 576 * 64 * 2)
    k.srd(20, "ws", WS_KM, WS_H - WS_KM)
    k.srd_finish()
    e("s_cmp_ge_u32 s2, 128")
    e(f"s_cbranch_scc1 {kvl}")
    g = Gemm(k, dict(mt=1, nt=9, wm=4, wk=1, nst=9, XS=1152, WSb=1152, nbuf=2, nw=8, lds_base=lds_base))
    e("s_lshr_b32 s30, s2, 2")
    e("s_and_b32 s31, s2, 3")
    e(f"s_mul_i32 s32, s30, {64 * 1152}")
    e(f"s_mul_i32 s33, s31, {144 * 2}")
    g.body(4, 8, 32, 33, 4)
    vt = g.vfree
    lane_consts(k, g, vt, vt + 1)
    e(f"s_lshl_b32 s34, s{g.s_wm}, 4")
    e(f"v_add_u32 v{vt}, s34, v{vt}")
    e(f"s_movk_i32 s34, 1152")
    e(f"v_mul_lo_u32 v{vt}, v{vt}, s34")
    e(f"v_lshl_add_u32 v{vt}, v{vt+1}, 3, v{vt}")
    e(f"s_add_u32 s34, s32, s33")
    e(f"s_mov_b32 s35, 0x{f32bits(QSCALE):08x}")
    for j in range(9):
        a = g.ACC + 4 * j
        for r in range(4):
            e(f"v_mul_f32 v{a+r}, s35, v{a+r}")
        e(f"v_cvt_pk_bf16_f32 v{a}, v{a}, v{a+1}")
        e(f"v_cvt_pk_bf16_f32 v{a+1}, v{a+2}, v{a+3}")
        e(f"buffer_store_dwordx2 v[{a}:{a+1}], v{vt}, s[12:15], s34 offen offset:{32*j}{ST2}")
    e(f"s_branch {done}")
    k.label(kvl)
    g2 = Gemm(k, dict(mt=1, nt=4, wm=4, wk=1, nst=9, XS=1152, WSb=128, gap=32, nbuf=2, lds_base=lds_base))
    e("s_sub_u32 s30, s2, 128")
    e(f"s_mul_i32 s32, s30, {64 * 1152}")
    e("s_mov_b32 s33, 0")
    g2.body(4, 16, 32, 33, 4)
    vt = g2.vfree
    A = g2.ACC
    lane_consts(k, g2, vt, vt + 1)
    e(f"s_lshl_b32 s34, s{g2.s_wm}, 4")
    e(f"s_lshl_b32 s35, s30, 6")
    e(f"s_add_u32 s34, s34, s35")
    e(f"v_add_u32 v{vt}, s34, v{vt}")
    tk, gg, t2, t3 = vt, vt + 1, vt + 2, vt + 3
    big = A + 16
    e(f"v_mov_b32 v{big}, 0x80000000")
    e(f"v_lshrrev_b32 v{t2}, 5, v{tk}")
    e(f"v_lshlrev_b32 v{t2}, 10, v{t2}")
    e(f"v_and_b32 v{t3}, 31, v{tk}")
    e(f"v_lshl_add_u32 v{t2}, v{t3}, 4, v{t2}")
    e(f"v_lshrrev_b32 v{t3}, 1, v{gg}")
    e(f"v_lshl_add_u32 v{t2}, v{t3}, 9, v{t2}")
    e(f"v_and_b32 v{t3}, 1, v{gg}")
    e(f"v_lshl_add_u32 v{t2}, v{t3}, 3, v{t2}")
    e(f"v_cvt_pk_bf16_f32 v{A}, v{A}, v{A+1}")
    e(f"v_cvt_pk_bf16_f32 v{A+1}, v{A+2}, v{A+3}")
    e(f"buffer_store_dwordx2 v[{A}:{A+1}], v{t2}, s[20:23], 0 offen")
    e(f"v_cmp_eq_u32 vcc, 0, v{gg}")
    e(f"v_lshlrev_b32 v{t2}, 2, v{tk}")
    e(f"v_add_u32 v{t2}, {WS_KE - WS_KM}, v{t2}")
    e(f"v_cndmask_b32 v{t2}, v{big}, v{t2}, vcc")
    e(f"v_cvt_pk_bf16_f32 v{A+4}, v{A+4}, v{A+5}")
    e(f"buffer_store_dword v{A+4}, v{t2}, s[20:23], 0 offen")
    e(f"v_lshrrev_b32 v{t2}, 4, v{tk}")
    e(f"v_lshlrev_b32 v{t2}, 10, v{t2}")
    e(f"v_bfe_u32 v{t3}, v{tk}, 2, 1")
    e(f"v_lshl_add_u32 v{t2}, v{t3}, 9, v{t2}")
    e(f"v_and_b32 v{t3}, 3, v{tk}")
    e(f"v_lshl_add_u32 v{t2}, v{t3}, 1, v{t2}")
    e(f"v_bfe_u32 v{t3}, v{tk}, 3, 1")
    e(f"v_lshl_add_u32 v{t2}, v{t3}, 3, v{t2}")
    e(f"v_add_u32 v{t2}, {WS_VT - WS_KM}, v{t2}")
    e(f"v_lshl_add_u32 v{t3}, v{gg}, 6, v{t2}")
    e(f"v_cvt_pk_bf16_f32 v{A+8}, v{A+8}, v{A+9}")
    e(f"v_cvt_pk_bf16_f32 v{A+9}, v{A+10}, v{A+11}")
    e(f"buffer_store_short v{A+8}, v{t3}, s[20:23], 0 offen")
    e(f"buffer_store_short_d16_hi v{A+8}, v{t3}, s[20:23], 0 offen offset:16")
    e(f"buffer_store_short v{A+9}, v{t3}, s[20:23], 0 offen offset:32")
    e(f"buffer_store_short_d16_hi v{A+9}, v{t3}, s[20:23], 0 offen offset:48")
    e(f"v_cndmask_b32 v{t3}, v{big}, v{t2}, vcc")
    e(f"v_cvt_pk_bf16_f32 v{A+12}, v{A+12}, v{A+13}")
    e(f"v_mov_b32 v{A+13}, 0x3f80")
    e(f"buffer_store_short v{A+12}, v{t3}, s[20:23], 0 offen offset:256")
    e(f"buffer_store_short_d16_hi v{A+12}, v{t3}, s[20:23], 0 offen offset:272")
    e(f"buffer_store_short v{A+13}, v{t3}, s[20:23], 0 offen offset:288")
    e(f"s_branch {done}")
    k.label(pfl)
    if not os.environ.get("NOPF"):
        k.srd(4, "w2")
        k.srd(8, "wo")
        k.srd_finish()
        e("v_lshlrev_b32 v4, 4, v0")
        e("s_sub_u32 s3, s2, 160")
        e("s_lshl_b32 s3, s3, 12")
        for i in range(14):
            e(f"s_add_u32 s29, s3, {i * 96 * 4096}")
            e(f"buffer_load_dwordx4 v[8:11], v4, s[4:7], s29 offen")
        for i in range(2):
            e(f"s_add_u32 s29, s3, {i * 96 * 4096}")
            e(f"buffer_load_dwordx4 v[8:11], v4, s[8:11], s29 offen")
    return max(g.lds, g2.lds)


def gen_gemm1(name):
    k = Kern(name)
    e = k.e
    done = k.newlabel("done")
    e("s_cmp_ge_u32 s2, 256")
    e(f"s_cbranch_scc1 {done}")
    attl = k.newlabel("att")
    k.wgstamp(0, 2)
    split_roles(k, attl)
    k.srd(4, "ws", WS_Y, SZ_ACT)
    k.srd(8, "w1")
    k.srd(12, "ws", WS_H, S_TOK * F * 2)
    k.srd(16, "b1")
    k.srd_finish()
    g = Gemm(k, dict(mt=2, nt=9, wm=8, wk=1, nst=9, XS=1152, WSb=9216, nbuf=2))
    e("s_and_b32 s34, s2, 1")
    e("s_lshl_b32 s34, s34, 2")
    e("s_bfe_u32 s35, s2, 0x20003")
    e("s_add_u32 s30, s34, s35")
    e("s_bfe_u32 s34, s2, 0x20001")
    e("s_lshl_b32 s34, s34, 3")
    e("s_lshr_b32 s35, s2, 5")
    e("s_add_u32 s31, s34, s35")
    e(f"s_mul_i32 s32, s30, {256 * 1152}")
    e(f"s_mul_i32 s33, s31, {144 * 2}")

    def pre(g):
        t = g.vt
        e(f"v_bfe_u32 v{t[0]}, v0, 4, 2")
        e(f"v_lshlrev_b32 v{t[0]}, 3, v{t[0]}")
        A = g.ACC
        for j in range(9):
            e(f"buffer_load_dwordx2 v[{A+4*j}:{A+4*j+1}], v{t[0]}, s[16:19], s33 offen offset:{32*j}")
    g.pre_init = pre

    def init(g):
        A = g.ACC
        e(f"s_waitcnt vmcnt({g.pro_dma})")
        for j in range(9):
            a = A + 4 * j
            e(f"v_and_b32 v{a+3}, 0xffff0000, v{a+1}")
            e(f"v_lshlrev_b32 v{a+2}, 16, v{a+1}")
            e(f"v_and_b32 v{a+1}, 0xffff0000, v{a}")
            e(f"v_lshlrev_b32 v{a}, 16, v{a}")
        for i in range(1, 2):
            for r in range(36):
                e(f"v_mov_b32 v{A + 36*i + r}, v{A + r}")

    g.body(4, 8, 32, 33, 4, acc_init=init)
    vt = g.vfree
    HB = 576 * 256
    lane_consts(k, g, vt, vt + 1)
    e(f"v_lshlrev_b32 v{vt}, 4, v{vt}")
    e(f"v_and_b32 v{vt+2}, 1, v{vt+1}")
    e(f"v_lshrrev_b32 v{vt+3}, 1, v{vt+1}")
    W0 = g.ACC + 72
    e(f"v_lshl_add_u32 v{W0}, v{vt+3}, 8, v{vt}")
    e(f"v_lshl_add_u32 v{W0}, v{vt+2}, 3, v{W0}")
    e(f"v_lshl_add_u32 v{vt}, v{vt+2}, 9, v{vt}")
    e(f"v_lshl_add_u32 v{vt}, v{vt+3}, 8, v{vt}")
    e(f"s_lshl_b32 s34, s30, 4")
    e(f"s_lshl_b32 s35, s{g.s_wm}, 1")
    e(f"s_add_u32 s34, s34, s35")
    e(f"s_mul_i32 s34, s34, {HB}")
    e(f"s_mul_i32 s35, s31, {18 * 256}")
    e(f"s_add_u32 s34, s34, s35")
    e(f"s_mov_b32 s36, 0x{f32bits(GELU_C0):08x}")
    e(f"s_mov_b32 s37, 0x{f32bits(GELU_C1):08x}")
    e(f"v_mov_b32 v{vt+1}, s36")
    TT = W0 + 2

    def gelu4(a):
        for r in range(4):
            e(f"v_mul_f32 v{TT+r}, v{a+r}, v{a+r}")
        for r in range(4):
            e(f"v_fma_f32 v{TT+r}, v{TT+r}, s37, v{vt+1}")
        for r in range(4):
            e(f"v_mul_f32 v{TT+r}, v{TT+r}, v{a+r}")
        for r in range(4):
            e(f"v_exp_f32 v{TT+r}, v{TT+r}")
        for r in range(4):
            e(f"v_add_f32 v{TT+r}, 1.0, v{TT+r}")
        for r in range(4):
            e(f"v_rcp_f32 v{TT+r}, v{TT+r}")
        for r in range(4):
            e(f"v_mul_f32 v{a+r}, v{a+r}, v{TT+r}")

    for i in range(2 if not os.environ.get("G_NOEPI") else 0):
        for j in range(0, 9, 2):
            a = g.ACC + 4 * (i * 9 + j)
            e(f"s_add_u32 s35, s34, {i * HB + j * 512}")
            gelu4(a)
            e(f"v_cvt_pk_bf16_f32 v{a}, v{a}, v{a+1}")
            e(f"v_cvt_pk_bf16_f32 v{a+1}, v{a+2}, v{a+3}")
            if j < 8:
                gelu4(a + 4)
                e(f"v_cvt_pk_bf16_f32 v{a+2}, v{a+4}, v{a+5}")
                e(f"v_cvt_pk_bf16_f32 v{a+3}, v{a+6}, v{a+7}")
                e("s_nop 1")
                e(f"v_permlane16_swap_b32 v{a}, v{a+2}")
                e(f"v_permlane16_swap_b32 v{a+1}, v{a+3}")
                e(f"buffer_store_dwordx4 v[{a}:{a+3}], v{vt}, s[12:15], s35 offen{STF}")
            else:
                e(f"buffer_store_dwordx2 v[{a}:{a+1}], v{W0}, s[12:15], s35 offen{STF}")
    k.stamp(15, 0)
    k.wgstamp(1, 2)
    e("s_endpgm")
    k.label(attl)
    qlds = qkv_body(k, g.lds, done)
    k.label(done)
    e("s_endpgm")
    k.maxs = 60
    k.ldsz = qlds
    return k


def gen_gemm2(name):
    k = Kern(name)
    e = k.e
    done = k.newlabel("done")
    e("s_cmp_ge_u32 s2, 256")
    e(f"s_cbranch_scc1 {done}")
    attl = k.newlabel("att")
    k.wgstamp(0, 3)
    k.wgstamp(2, 3)
    split_roles(k, attl)
    if os.environ.get("G2_OFF"):
        e("s_endpgm")
    k.srd(4, "ws", WS_H, S_TOK * F * 2)
    k.srd(8, "w2")
    k.srd(12, "ws", WS_P, 4 * S_TOK * D * 4)
    k.srd_finish()
    g = Gemm(k, dict(mt=2, nt=9, wm=4, wk=2, nst=18, XS=9216, WSb=1152, nbuf=3, xblk=576 * 256))
    e("s_and_b32 s34, s2, 1")
    e("s_lshl_b32 s34, s34, 3")
    e("s_bfe_u32 s35, s2, 0x30003")
    e("s_add_u32 s30, s34, s35")
    e("s_lshr_b32 s36, s2, 6")
    e("s_bfe_u32 s37, s2, 0x20001")
    e(f"s_mul_i32 s32, s30, {8 * 576 * 256}")
    e(f"s_mul_i32 s34, s37, {144 * 256}")
    e("s_add_u32 s32, s32, s34")
    e(f"s_mul_i32 s33, s37, {1152 * 1152}")
    e(f"s_mul_i32 s34, s36, {144 * 2}")
    e("s_add_u32 s33, s33, s34")
    g.body(4, 8, 32, 33, 4)
    vt = g.vfree
    A = g.ACC
    e("s_barrier")
    e(f"v_and_b32 v{vt}, 63, v0")
    e(f"v_lshlrev_b32 v{vt}, 4, v{vt}")
    e(f"s_mul_i32 s34, s{g.s_wave}, {9 * 1024}")
    e(f"v_add_u32 v{vt+1}, s34, v{vt}")
    e(f"s_xor_b32 s35, s{g.s_wave}, 4")
    e(f"s_mul_i32 s34, s35, {9 * 1024}")
    e(f"v_add_u32 v{vt+2}, s34, v{vt}")
    l1 = k.newlabel("wk1")
    l2 = k.newlabel("join")
    e(f"s_cmp_eq_u32 s{g.s_wk}, 1")
    e(f"s_cbranch_scc1 {l1}")
    for q in range(9):
        e(f"ds_write_b128 v{vt+1}, v[{A+36+4*q}:{A+36+4*q+3}] offset:{1024*q}")
    e(f"s_branch {l2}")
    k.label(l1)
    for q in range(9):
        e(f"ds_write_b128 v{vt+1}, v[{A+4*q}:{A+4*q+3}] offset:{1024*q}")
    e("s_nop 1")
    for r in range(36):
        e(f"v_mov_b32 v{A+r}, v{A+36+r}")
    k.label(l2)
    e("s_waitcnt lgkmcnt(0)")
    e("s_barrier")
    for q in range(9):
        e(f"ds_read_b128 v[{A+36+4*q}:{A+36+4*q+3}], v{vt+2} offset:{1024*q}")
    e(f"s_lshl_b32 s34, s37, 7")
    e(f"s_lshl_b32 s35, s30, 3")
    e(f"s_add_u32 s34, s34, s35")
    e(f"s_lshl_b32 s35, s{g.s_wm}, 1")
    e(f"s_add_u32 s34, s34, s35")
    e(f"s_add_u32 s34, s34, s{g.s_wk}")
    e(f"s_mul_i32 s34, s34, 36")
    e(f"s_mul_i32 s35, s36, 9")
    e(f"s_add_u32 s34, s34, s35")
    e(f"s_lshl_b32 s34, s34, 10")
    for q in range(9):
        e(f"s_waitcnt lgkmcnt({8 - q})")
        a = A + 4 * q
        for r in range(4):
            e(f"v_add_f32 v{a+r}, v{a+r}, v{a+36+r}")
        e(f"s_add_u32 s35, s34, {1024 * q}")
        e(f"buffer_store_dwordx4 v[{a}:{a+3}], v{vt}, s[12:15], s35 offen{STF}")
    k.stamp(15, 0)
    k.wgstamp(1, 3)
    k.wgstamp(3, 3)
    e("s_endpgm")
    k.label(attl)
    attn_body(k, g.lds, mask_of(eval(os.environ.get('BARS2', '[0,1,4,5,8,9,12,13,16,17,20,29]'))), done)
    k.label(done)
    e("s_endpgm")
    k.maxs = max(k.maxs, 60)
    k.ldsz = g.lds + 50 * 1024
    return k


def gen_final(name):
    k = Kern(name)
    e = k.e
    done = k.newlabel("done")
    e("s_cmp_ge_u32 s2, 256")
    e(f"s_cbranch_scc1 {done}")
    k.wgstamp(0, 4)
    k.wgstamp(2, 4)
    k.srd(4, "ws", WS_O, SZ_ACT)
    k.srd(8, "wo")
    k.srd(12, "ws", WS_P, 4 * S_TOK * D * 4)
    k.srd(16, "x")
    k.srd(20, "b2")
    k.srd(24, "out")
    k.srd_finish()
    g = Gemm(k, dict(mt=1, nt=9, wm=2, wk=2, nst=9, XS=1152, WSb=1152, nbuf=6, nw=8))
    e("s_lshr_b32 s30, s2, 2")
    e("s_and_b32 s31, s2, 3")
    e(f"s_mul_i32 s32, s30, {32 * 1152}")
    e(f"s_mul_i32 s33, s31, {144 * 2}")
    EB = 108
    LB = 112
    k.maxv = max(k.maxv, LB + 9 * 8)

    def pre(g):
        lane_consts(k, g, EB, EB + 1)
        e(f"v_bfe_u32 v{EB+2}, v0, 6, 1")
        e(f"v_lshl_add_u32 v{EB}, v{EB+2}, 4, v{EB}")
        e(f"s_movk_i32 s34, 1152")
        e(f"v_mul_lo_u32 v{EB+2}, v{EB}, s34")
        e(f"v_lshl_add_u32 v{EB+2}, v{EB+1}, 3, v{EB+2}")
        e(f"v_and_b32 v{EB+3}, 63, v0")
        e(f"v_lshlrev_b32 v{EB+3}, 4, v{EB+3}")
        e(f"v_lshlrev_b32 v{EB+1}, 3, v{EB+1}")
        e(f"s_add_u32 s34, s32, s33")
        e(f"s_lshl_b32 s36, s30, 1")
        e(f"s_add_u32 s35, s{g.s_wm}, s36")
        e(f"s_mul_i32 s35, s35, 36")
        e(f"s_mul_i32 s36, s31, 9")
        e(f"s_add_u32 s35, s35, s36")
        e(f"s_lshl_b32 s35, s35, 10")
        e(f"s_mul_i32 s36, s{g.s_wk}, {2 * S_TOK * D * 4}")
        e(f"s_add_u32 s35, s35, s36")
        for j in range(9):
            B = LB + 8 * j
            for s_ in range(2):
                e(f"s_add_u32 s36, s35, {s_ * S_TOK * D * 4 + 1024 * j}")
                dst = g.ACC + 4 * j if s_ == 0 else B + 4
                e(f"buffer_load_dwordx4 v[{dst}:{dst+3}], v{EB+3}, s[12:15], s36 offen")
        lb1 = k.newlabel("lb2")
        lb2 = k.newlabel("lbj")
        e(f"s_cmp_eq_u32 s{g.s_wk}, 1")
        e(f"s_cbranch_scc1 {lb1}")
        for j in range(9):
            B = LB + 8 * j
            e(f"buffer_load_dwordx2 v[{B}:{B+1}], v{EB+2}, s[16:19], s34 offen offset:{32*j}")
        e(f"s_branch {lb2}")
        k.label(lb1)
        for j in range(9):
            B = LB + 8 * j
            e(f"buffer_load_dwordx2 v[{B}:{B+1}], v{EB+1}, s[20:23], s33 offen offset:{32*j}")
        k.label(lb2)
    g.pre_init = pre

    def init(g):
        e(f"s_waitcnt vmcnt({g.pro_dma})")
        for j in range(9):
            B = LB + 8 * j
            a = g.ACC + 4 * j
            for r in range(4):
                e(f"v_add_f32 v{a+r}, v{a+r}, v{B+4+r}")
            e(f"v_lshlrev_b32 v{B+4}, 16, v{B}")
            e(f"v_and_b32 v{B+5}, 0xffff0000, v{B}")
            e(f"v_lshlrev_b32 v{B+6}, 16, v{B+1}")
            e(f"v_and_b32 v{B+7}, 0xffff0000, v{B+1}")
            for r in range(4):
                e(f"v_add_f32 v{a+r}, v{a+r}, v{B+4+r}")

    g.body(4, 8, 32, 33, 4, acc_init=init)
    assert g.vfree + 4 <= EB
    A = g.ACC
    e("s_barrier")
    e(f"s_mul_i32 s36, s{g.s_wm}, {9 * 1024}")
    e(f"v_add_u32 v{EB}, s36, v{EB+3}")
    l1 = k.newlabel("wk0")
    e(f"s_cmp_eq_u32 s{g.s_wk}, 0")
    e(f"s_cbranch_scc1 {l1}")
    for q in range(9):
        e(f"ds_write_b128 v{EB}, v[{A+4*q}:{A+4*q+3}] offset:{1024*q}")
    e("s_waitcnt lgkmcnt(0)")
    e("s_barrier")
    e("s_endpgm")
    k.label(l1)
    e("s_barrier")
    for q in range(9):
        e(f"ds_read_b128 v[{LB+4*q}:{LB+4*q+3}], v{EB} offset:{1024*q}")
    for j in range(9):
        a = A + 4 * j
        e(f"s_waitcnt lgkmcnt({8 - j})")
        for r in range(4):
            e(f"v_add_f32 v{a+r}, v{a+r}, v{LB+4*j+r}")
        e(f"v_cvt_pk_bf16_f32 v{a}, v{a}, v{a+1}")
        e(f"v_cvt_pk_bf16_f32 v{a+1}, v{a+2}, v{a+3}")
        e(f"buffer_store_dwordx2 v[{a}:{a+1}], v{EB+2}, s[24:27], s34 offen offset:{32*j}")
    k.wgstamp(1, 4)
    k.wgstamp(3, 4)
    k.label(done)
    e("s_endpgm")
    k.maxs = 60
    k.ldsz = g.lds
    return k


def attn_body(k, lds_base, bar_mask, done):
    wbase = 0
    e = k.e
    k.srd(4, "ws", WS_Q, SZ_ACT)
    k.srd(8, "ws", WS_KM, WS_H - WS_KM)
    k.srd(12, "ws", WS_O, SZ_ACT)
    k.srd_finish()
    k.stamp(0, 1)
    e(f"s_setprio {os.environ.get('ATT_PRIO', '3')}")
    Q0, Q1 = 4, 8
    KM = [12, 16]
    K1 = [20, 24]
    VV = [28, 36]
    SS = [44, 60]
    P = 76
    O = 84
    T = 100
    vKo, vKe, vVo, vNM, vML, vQo, vBig = 108, 109, 110, 111, 112, 113, 114
    k.maxv = max(k.maxv, 116)
    k.maxs = max(k.maxs, 36)
    sK, sKE, sV, sT, sFl, sCnt, sBM = 20, 21, 22, 23, 24, 25, 26
    e(f"v_bfe_u32 v{T}, v0, 6, 3")
    e("s_nop 0")
    e(f"v_readfirstlane_b32 s16, v{T}")
    e("s_nop 3")
    e("s_lshl_b32 s17, s2, 3")
    e("s_add_u32 s16, s16, s17")
    if wbase:
        e(f"s_add_u32 s16, s16, {wbase}")
    e("s_lshr_b32 s17, s16, 6")
    e("s_and_b32 s18, s16, 63")
    e(f"v_and_b32 v{T}, 31, v0")
    e(f"v_bfe_u32 v{T+1}, v0, 5, 1")
    e(f"v_mov_b32 v{vBig}, 0x80000000")
    e("s_lshl_b32 s19, s18, 5")
    e(f"v_add_u32 v{T+2}, s19, v{T}")
    e("s_movk_i32 s19, 1152")
    e(f"v_mul_lo_u32 v{T+2}, v{T+2}, s19")
    e("s_mul_i32 s19, s17, 36")
    e(f"v_add_u32 v{vQo}, s19, v{T+2}")
    e(f"v_lshl_add_u32 v{T+2}, v{T+1}, 4, v{vQo}")
    e(f"buffer_load_dwordx4 v[{Q0}:{Q0+3}], v{T+2}, s[4:7], 0 offen")
    e(f"v_cmp_eq_u32 vcc, 0, v{T+1}")
    e("s_nop 1")
    e(f"v_cndmask_b32 v{T+3}, v{vBig}, v{vQo}, vcc")
    e(f"buffer_load_dword v{Q1}, v{T+3}, s[4:7], 0 offen offset:32")
    e(f"v_cndmask_b32 v{vML}, 0, -1, vcc")
    e(f"v_mov_b32 v{Q1+1}, 0")
    e(f"v_mov_b32 v{Q1+2}, 0")
    e(f"v_mov_b32 v{Q1+3}, 0")
    e(f"v_mov_b32 v{vNM}, 0")
    e(f"v_and_b32 v{vKo}, 63, v0")
    e(f"v_lshlrev_b32 v{vKo}, 4, v{vKo}")
    e(f"v_lshlrev_b32 v{vKe}, 2, v{T}")
    e(f"v_add_u32 v{vKe}, {WS_KE - WS_KM}, v{vKe}")
    e(f"v_min_u32 v{vVo}, 18, v{T}")
    e(f"v_lshl_add_u32 v{vVo}, v{T+1}, 5, v{vVo}")
    e(f"v_lshlrev_b32 v{vVo}, 4, v{vVo}")
    e(f"v_add_u32 v{vVo}, {WS_VT - WS_KM}, v{vVo}")
    for b in range(2):
        e(f"v_mov_b32 v{K1[b]+1}, 0x3f80")
        e(f"v_mov_b32 v{K1[b]+2}, 0")
        e(f"v_mov_b32 v{K1[b]+3}, 0")
    e(f"s_mov_b32 s{sBM}, 0x{bar_mask:08x}")
    sMode = 27
    e(f"s_mov_b32 s{sMode}, 0")

    def loadK(b):
        e(f"buffer_load_dwordx4 v[{KM[b]}:{KM[b]+3}], v{vKo}, s[8:11], s{sK} offen")
        e(f"buffer_load_dword v{K1[b]}, v{vKe}, s[8:11], s{sKE} offen")
        e(f"s_add_u32 s{sK}, s{sK}, 1024")
        e(f"s_add_u32 s{sKE}, s{sKE}, 128")

    def loadV(b):
        e(f"buffer_load_dwordx4 v[{VV[b]}:{VV[b]+3}], v{vVo}, s[8:11], s{sV} offen")
        e(f"buffer_load_dwordx4 v[{VV[b]+4}:{VV[b]+7}], v{vVo}, s[8:11], s{sV} offen offset:1024")
        e(f"s_add_u32 s{sV}, s{sV}, 2048")

    def maxtree(s):
        e(f"v_max3_f32 v{T}, v{s}, v{s+1}, v{s+2}")
        e(f"v_max3_f32 v{T+1}, v{s+3}, v{s+4}, v{s+5}")
        e(f"v_max3_f32 v{T+2}, v{s+6}, v{s+7}, v{s+8}")
        e(f"v_max3_f32 v{T+3}, v{s+9}, v{s+10}, v{s+11}")
        e(f"v_max3_f32 v{T+4}, v{s+12}, v{s+13}, v{s+14}")
        e(f"v_max3_f32 v{T}, v{T}, v{T+1}, v{s+15}")
        e(f"v_max3_f32 v{T+2}, v{T+2}, v{T+3}, v{T+4}")
        e(f"v_max_f32 v{T}, v{T}, v{T+2}")

    def rescale(s):
        e(f"v_mov_b32 v{T+1}, v{T}")
        e("s_nop 7")
        e(f"v_permlane32_swap_b32 v{T}, v{T+1}")
        e("s_nop 1")
        e(f"v_max_f32 v{T}, v{T}, v{T+1}")
        e(f"v_max_f32 v{T}, s{sFl}, v{T}")
        e(f"v_sub_f32 v{T+1}, v{vNM}, v{T}")
        e(f"v_cvt_pk_bf16_f32 v{T+1}, v{T+1}, v{T+1}")
        e(f"v_lshlrev_b32 v{T+1}, 16, v{T+1}")
        e(f"v_sub_f32 v{T+2}, v{vNM}, v{T+1}")
        e(f"v_mov_b32 v{vNM}, v{T+1}")
        e(f"v_lshrrev_b32 v{T+3}, 16, v{T+1}")
        e(f"v_and_b32 v{Q1+1}, v{T+3}, v{vML}")
        e(f"v_exp_f32 v{T+3}, -v{T+2}")
        e("s_nop 7")
        e(f"v_min_f32 v{T+3}, 1.0, v{T+3}")
        for r in range(16):
            e(f"v_sub_f32 v{s+r}, v{s+r}, v{T+2}")
        for r in range(11):
            e(f"v_mul_f32 v{O+r}, v{O+r}, v{T+3}")
        e(f"s_mov_b32 s{sT}, 0x41000000")
        e(f"s_mov_b32 s{sFl}, 0")

    restart = k.newlabel("restart")
    safel = k.newlabel("safe")
    epil = k.newlabel("epi")
    k.label(restart)
    for r in range(16):
        e(f"v_mov_b32 v{O+r}, 0")
    e(f"v_mov_b32 v{Q1+1}, 0")
    e(f"v_mov_b32 v{vNM}, 0")
    e(f"s_mov_b32 s{sT}, 0xff800000")
    e(f"s_mov_b32 s{sFl}, 0xff800000")
    e(f"s_mov_b32 s{sK}, 0")
    e(f"s_mov_b32 s{sKE}, 0")
    e(f"s_mov_b32 s{sV}, 0")
    loadK(0)
    loadK(1)
    loadV(0)
    e("s_waitcnt vmcnt(4)")
    s0 = SS[0]
    e(f"v_mfma_f32_32x32x16_bf16 v[{s0}:{s0+15}], v[{KM[0]}:{KM[0]+3}], v[{Q0}:{Q0+3}], 0")
    e(f"v_mfma_f32_32x32x16_bf16 v[{s0}:{s0+15}], v[{K1[0]}:{K1[0]+3}], v[{Q1}:{Q1+3}], v[{s0}:{s0+15}]")
    loadK(0)
    loadV(1)
    e(f"s_mov_b32 s{sCnt}, 0")
    e("s_nop 7")
    e("s_nop 7")
    k.stamp(1, 1)
    e(f"s_cmp_lg_u32 s{sMode}, 0")
    e(f"s_cbranch_scc1 {safel}")
    rares = []

    def loop_body(safe):
        nonlocal e
        e_orig = e
        abl = os.environ.get("ABL", "")
        def e(l):
            if not safe:
                if "exp" in abl and "v_exp" in l: return
                if "cvt" in abl and "v_cvt" in l: return
                if "mfma" in abl and "mfma" in l: return
                if "load" in abl and "buffer_load" in l: return
            e_orig(l)
        try:
            loop_body2(safe)
        finally:
            e = e_orig

    def loop_body2(safe):
        loop = k.newlabel("loop")
        k.label(loop)
        for u in range(2):
            cur, nxt = u, 1 - u
            s = SS[cur]
            sn = SS[nxt]
            if safe:
                maxtree(s)
                e(f"v_cmp_lt_f32 vcc, s{sT}, v{T}")
                rl = k.newlabel("rare")
                bk = k.newlabel("back")
                rares.append((rl, bk, s))
                e(f"s_cbranch_vccnz {rl}")
                k.label(bk)
            n0 = 0 if safe else 4
            for r in range(n0):
                e(f"v_exp_f32 v{s+r}, v{s+r}")
            e("s_waitcnt vmcnt(6)")
            e(f"v_mfma_f32_32x32x16_bf16 v[{sn}:{sn+15}], v[{KM[nxt]}:{KM[nxt]+3}], v[{Q0}:{Q0+3}], 0")
            for r in range(n0, n0 + 4):
                e(f"v_exp_f32 v{s+r}, v{s+r}")
            e(f"v_mfma_f32_32x32x16_bf16 v[{sn}:{sn+15}], v[{K1[nxt]}:{K1[nxt]+3}], v[{Q1}:{Q1+3}], v[{sn}:{sn+15}]")
            loadK(nxt)
            for r in range(n0 + 4, 8):
                e(f"v_exp_f32 v{s+r}, v{s+r}")
            e(f"v_exp_f32 v{s+8}, v{s+8}")
            for r in range(4):
                e(f"v_cvt_pk_bf16_f32 v{P+r}, v{s+2*r}, v{s+2*r+1}")
            e(f"v_exp_f32 v{s+9}, v{s+9}")
            e("s_waitcnt vmcnt(6)")
            v = VV[cur]
            e(f"v_mfma_f32_32x32x16_bf16 v[{O}:{O+15}], v[{v}:{v+3}], v[{P}:{P+3}], v[{O}:{O+15}]")
            for r in range(10, 16):
                e(f"v_exp_f32 v{s+r}, v{s+r}")
            for r in range(4, 8):
                e(f"v_cvt_pk_bf16_f32 v{P+r}, v{s+2*r}, v{s+2*r+1}")
            e("s_nop 1")
            e(f"v_mfma_f32_32x32x16_bf16 v[{O}:{O+15}], v[{v+4}:{v+7}], v[{P+4}:{P+7}], v[{O}:{O+15}]")
            loadV(cur)
            if not safe:
                pass
        if bar_mask and not safe:
            nb = k.newlabel("nobar")
            e(f"s_bitcmp1_b32 s{sBM}, s{sCnt}")
            e(f"s_cbranch_scc0 {nb}")
            e("s_barrier")
            k.label(nb)
        e(f"s_add_u32 s{sCnt}, s{sCnt}, 1")
        e(f"s_cmp_lt_u32 s{sCnt}, 32")
        e(f"s_cbranch_scc1 {loop}")

    CH = 25 * 1024
    sSrc = [60, 61, 62, 63]
    sInc = [64, 65, 66, 67]
    sDst = 68
    sBuf = 69
    vLK, vLE, vLV = K1[1] , K1[1] + 2, K1[1] + 3
    k.maxs = max(k.maxs, 72)
    e("s_and_b32 s19, s16, 7")
    e(f"s_lshl_b32 s{sSrc[0]}, s19, 10")
    e(f"s_add_u32 s{sSrc[0]}, s{sSrc[0]}, 1024")
    e(f"s_mov_b32 s{sInc[0]}, 8192")
    e(f"s_lshl_b32 s{sSrc[1]}, s19, 10")
    e(f"s_add_u32 s{sSrc[1]}, s{sSrc[1]}, {WS_VT - WS_KM - 1024}")
    e(f"s_mov_b32 s{sInc[1]}, 16384")
    e("s_cmp_eq_u32 s19, 0")
    e(f"s_cselect_b32 s{sSrc[1]}, {WS_KE - WS_KM + 128}, s{sSrc[1]}")
    e(f"s_cselect_b32 s{sInc[1]}, 1024, s{sInc[1]}")
    e(f"s_lshl_b32 s{sSrc[2]}, s19, 10")
    e(f"s_add_u32 s{sSrc[2]}, s{sSrc[2]}, {WS_VT - WS_KM + 7 * 1024}")
    e(f"s_mov_b32 s{sInc[2]}, 16384")
    e(f"s_mov_b32 s{sSrc[3]}, {WS_VT - WS_KM + 15 * 1024}")
    e(f"s_mov_b32 s{sInc[3]}, 16384")
    e(f"s_lshl_b32 s{sDst}, s19, 10")
    e(f"s_add_u32 s{sDst}, s{sDst}, {lds_base}")
    e(f"s_mov_b32 s{sBuf}, 0")

    def chunk_dma():
        for j in range(4):
            lb = None
            if j == 3:
                lb = k.newlabel("nd")
                e("s_cmp_lg_u32 s19, 0")
                e(f"s_cbranch_scc1 {lb}")
            e(f"s_add_u32 s{sT}, s{sDst}, s{sBuf}")
            e(f"s_add_u32 m0, s{sT}, {j * 8192}")
            e("s_nop 0")
            e(f"buffer_load_dwordx4 v{vKo}, s[8:11], s{sSrc[j]} offen lds")
            e(f"s_add_u32 s{sSrc[j]}, s{sSrc[j]}, s{sInc[j]}")
            if lb:
                k.label(lb)
        e(f"s_xor_b32 s{sBuf}, s{sBuf}, {CH}")

    chunk_dma()
    maxtree(s0)
    rescale(s0)
    e("s_waitcnt vmcnt(0)")
    e(f"v_add_u32 v{vLK}, {lds_base}, v{vKo}")
    e(f"v_subrev_u32 v{vLE}, {WS_KE - WS_KM - lds_base - 8192}, v{vKe}")
    e(f"v_subrev_u32 v{vLV}, {WS_VT - WS_KM - lds_base - 9216}, v{vVo}")
    e("s_barrier")
    chunk_dma()
    km, k1, vv = KM[0], K1[0], VV[0]

    def rd(t):
        e(f"ds_read_b128 v[{km}:{km+3}], v{vLK} offset:{1024*t}")
        e(f"ds_read_b32 v{k1}, v{vLE} offset:{128*t}")
        e(f"ds_read_b128 v[{vv}:{vv+3}], v{vLV} offset:{2048*t}")
        e(f"ds_read_b128 v[{vv+4}:{vv+7}], v{vLV} offset:{2048*t+1024}")

    rd(0)
    e(f"s_mov_b32 s{sCnt}, 0")
    floop = k.newlabel("floop")
    k.label(floop)
    e_orig = e
    abl = os.environ.get("ABL2", "")
    def e(l):
        if "exp" in abl and "v_exp" in l: return
        if "cvt" in abl and "v_cvt" in l: return
        if "qk" in abl and "mfma" in l and f"v[{O}:" not in l: return
        if "pv" in abl and "mfma" in l and f"v[{O}:" in l: return
        if "lds" in abl and ("ds_read" in l or "lgkmcnt" in l): return
        e_orig(l)
    for t in range(8):
        cur, nxt = t & 1, 1 - (t & 1)
        s = SS[cur]
        sn = SS[nxt]
        for r in range(4):
            e(f"v_exp_f32 v{s+r}, v{s+r}")
        e("s_waitcnt lgkmcnt(3)")
        e(f"v_mfma_f32_32x32x16_bf16 v[{sn}:{sn+15}], v[{km}:{km+3}], v[{Q0}:{Q0+3}], 0")
        for r in range(4, 8):
            e(f"v_exp_f32 v{s+r}, v{s+r}")
        e("s_waitcnt lgkmcnt(2)")
        e(f"v_mfma_f32_32x32x16_bf16 v[{sn}:{sn+15}], v[{k1}:{k1+3}], v[{Q1}:{Q1+3}], v[{sn}:{sn+15}]")
        e(f"v_exp_f32 v{s+8}, v{s+8}")
        for r in range(4):
            e(f"v_cvt_pk_bf16_f32 v{P+r}, v{s+2*r}, v{s+2*r+1}")
        e(f"v_exp_f32 v{s+9}, v{s+9}")
        e("s_waitcnt lgkmcnt(1)")
        e(f"v_mfma_f32_32x32x16_bf16 v[{O}:{O+15}], v[{vv}:{vv+3}], v[{P}:{P+3}], v[{O}:{O+15}]")
        for r in range(10, 16):
            e(f"v_exp_f32 v{s+r}, v{s+r}")
        for r in range(4, 8):
            e(f"v_cvt_pk_bf16_f32 v{P+r}, v{s+2*r}, v{s+2*r+1}")
        e("s_waitcnt lgkmcnt(0)")
        e("s_nop 0")
        e(f"v_mfma_f32_32x32x16_bf16 v[{O}:{O+15}], v[{vv+4}:{vv+7}], v[{P+4}:{P+7}], v[{O}:{O+15}]")
        if t < 7:
            rd(t + 1)
        if t & 1:
            if t == 7:
                e("s_waitcnt vmcnt(0)")
                e("s_barrier")
                e(f"v_xor_b32 v{vLK}, {CH}, v{vLK}") if False else None
                flip = k.newlabel("fl")
                e(f"s_sub_u32 s{sT}, {CH}, s{sBuf}")
                e(f"s_lshl_b32 s{sT}, s{sT}, 1")
                e(f"s_sub_u32 s{sT}, s{sT}, {CH}")
                for vr_ in (vLK, vLE, vLV):
                    e(f"v_add_u32 v{vr_}, s{sT}, v{vr_}")
                chunk_dma()
                rd(0)
            else:
                nb = k.newlabel("nobar")
                e(f"s_bitcmp1_b32 s{sBM}, s{sCnt}")
                e(f"s_cbranch_scc0 {nb}")
                e("s_barrier")
                k.label(nb)
            e(f"s_add_u32 s{sCnt}, s{sCnt}, 1")
    e = e_orig
    e(f"s_cmp_lt_u32 s{sCnt}, 32")
    e(f"s_cbranch_scc1 {floop}")
    if abl:
        e(f"v_mov_b32 v{O+10}, 1.0")
    e("s_waitcnt vmcnt(0) lgkmcnt(0)")
    for b_ in range(2):
        e(f"v_mov_b32 v{K1[b_]+1}, 0x3f80")
        e(f"v_mov_b32 v{K1[b_]+2}, 0")
        e(f"v_mov_b32 v{K1[b_]+3}, 0")
    k.stamp(2, 1)
    e("s_nop 15")
    e("s_nop 3")
    e(f"v_mov_b32 v{T}, v{O+10}")
    e(f"v_mov_b32 v{T+1}, v{O+10}")
    e("s_nop 1")
    e(f"v_permlane32_swap_b32 v{T}, v{T+1}")
    e(f"s_mov_b32 s{sT}, 0x5f800000")
    e("s_nop 1")
    e(f"v_cmp_nlt_f32 vcc, v{T}, s{sT}" if False else f"v_cmp_ngt_f32 vcc, s{sT}, v{T}")
    e(f"s_cbranch_vccz {epil}")
    e("s_waitcnt vmcnt(0)")
    e(f"s_mov_b32 s{sMode}, 1")
    e(f"s_branch {restart}")
    k.label(safel)
    loop_body(True)
    e("s_nop 15")
    e("s_nop 3")
    e(f"v_mov_b32 v{T}, v{O+10}")
    e(f"v_mov_b32 v{T+1}, v{O+10}")
    e("s_nop 1")
    e(f"v_permlane32_swap_b32 v{T}, v{T+1}")
    e("s_nop 1")
    k.label(epil)
    e(f"v_rcp_f32 v{T}, v{T}")
    e("s_nop 0")
    for r in range(10):
        e(f"v_mul_f32 v{O+r}, v{O+r}, v{T}")
    for r in range(5):
        e(f"v_cvt_pk_bf16_f32 v{O+r}, v{O+2*r}, v{O+2*r+1}")
    e(f"v_bfe_u32 v{T+1}, v0, 5, 1")
    e(f"v_lshl_add_u32 v{T+2}, v{T+1}, 3, v{vQo}")
    e(f"buffer_store_dwordx2 v[{O}:{O+1}], v{T+2}, s[12:15], 0 offen{ST2}")
    e(f"buffer_store_dwordx2 v[{O+2}:{O+3}], v{T+2}, s[12:15], 0 offen offset:16{ST2}")
    e(f"v_cmp_eq_u32 vcc, 0, v{T+1}")
    e("s_nop 1")
    e(f"v_cndmask_b32 v{T+3}, v{vBig}, v{vQo}, vcc")
    e(f"buffer_store_dword v{O+4}, v{T+3}, s[12:15], 0 offen offset:32")
    e(f"s_branch {done}")
    for (rl, bk, s) in rares:
        k.label(rl)
        rescale(s)
        e(f"s_branch {bk}")


def split_roles(k, attl):
    e = k.e
    e("v_lshrrev_b32 v1, 9, v0")
    e("s_nop 0")
    e("v_readfirstlane_b32 s3, v1")
    e("s_nop 3")
    e("s_cmp_lg_u32 s3, 0")
    e(f"s_cbranch_scc1 {attl}")


def mask_of(its):
    m = 0
    for i in its:
        m |= 1 << i
    return m


HEADER = open("parallel_sum__grouped_kv_mqa__mixer_channel_mlp__prompt.s.ref").read().split("; Override launch")[0]


def emit(kernels, launches):
    out = [HEADER.rstrip()]
    for (kn, grid, block, lds) in launches:
        out.append(f"; @launch kernel={kn} grid=({grid},1,1) block=({block},1,1) lds={lds}")
    out.append('.amdgcn_target "amdgcn-amd-amdhsa--gfx950"')
    out.append(".text")
    for k in kernels:
        out.append(f".globl {k.name}")
        out.append(".p2align 8")
        out.append(f".type {k.name},@function")
        out.append(f"{k.name}:")
        out.append(k.text())
    out.append('.section .rodata,"a"')
    for k in kernels:
        nv = k.maxv
        acc = -(-nv // 4) * 4
        out.append(".p2align 6")
        out.append(f".amdhsa_kernel {k.name}")
        out.append(f"  .amdhsa_next_free_vgpr {nv}")
        out.append(f"  .amdhsa_next_free_sgpr {100 if getattr(k,'stamped',False) else max(k.maxs, 16)}")
        out.append(f"  .amdhsa_accum_offset {acc}")
        out.append("  .amdhsa_group_segment_fixed_size 0")
        out.append("  .amdhsa_kernarg_size 104")
        out.append("  .amdhsa_user_sgpr_count 2")
        out.append("  .amdhsa_user_sgpr_kernarg_segment_ptr 1")
        out.append("  .amdhsa_system_sgpr_workgroup_id_x 1")
        out.append(".end_amdhsa_kernel")
    return "\n".join(out) + "\n"


def main():
    ln = gen_ln("ln_kernel")
    g1 = gen_gemm1("gemm1_kernel")
    g2 = gen_gemm2("gemm2_kernel")
    fin = gen_final("final_kernel")
    kernels = [ln, g1, g2, fin]
    launches = [("ln_kernel", 256, 256, 0),
                ("gemm1_kernel", 256, 768, g1.ldsz),
                ("gemm2_kernel", 256, 1024, g2.ldsz),
                ("final_kernel", 256, 256, fin.ldsz)]
    txt = emit(kernels, launches)
    path = sys.argv[1] if len(sys.argv) > 1 else "parallel_sum__grouped_kv_mqa__mixer_channel_mlp__prompt.s"
    open(path, "w").write(txt)
    for k in kernels:
        print(k.name, "vgpr", k.maxv, "lds", getattr(k, "ldsz", 0), "lines", len(k.L))


if __name__ == "__main__":
    main()

    open("gen_consts.py", "w").write(
        "".join(f"{n} = {globals()[n]!r}\n" for n in ["WS_XN", "WS_Y", "WS_Q", "WS_O", "WS_WKV", "WS_KM", "WS_KE", "WS_VT", "WS_H", "WS_P", "QSCALE"]))
```
